```python
import torch

def _softmax(x, axis=-1):
    return torch.softmax(x, dim=axis)

def _gelu(x):
    return torch.nn.functional.gelu(x, approximate='tanh')

def _silu(x):
    return torch.nn.functional.silu(x)

def _sigmoid(x):
    return torch.sigmoid(x)

def _layernorm(x, axis=-1, eps=1e-05):
    m = x.mean(dim=axis, keepdim=True)
    v = x.var(dim=axis, keepdim=True, unbiased=False)
    return (x - m) / torch.sqrt(v + eps)

def _scatter_add(tgt, idx, src, axis=0):
    return tgt.clone().index_add_(axis, idx, src)

def _segment_sum(src, seg, n):
    out = torch.zeros((n,) + src.shape[1:], dtype=src.dtype)
    return out.index_add_(0, seg, src)

def _pad(x, pw):
    flat = tuple((v for pair in reversed(pw) for v in pair))
    return torch.nn.functional.pad(x, flat)
kernel_name = 'adaLN_cond__gqa_block_cached__glu_gated_bilinear__prompt'

def setup_inputs():

    _w = lambda a: (lambda t: t.to(torch.bfloat16) if t.is_floating_point() else t)(torch.as_tensor(a))

    def _A_setup():
        B, Sq, D = (1, 2048, 512)
        Hq, Hkv, Sk, Dh = (32, 32, 2048, 128)
        assert Hq % Hkv == 0, (Hq, Hkv)
        return {'x': _w((lambda *s: torch.randn(*s, dtype=torch.bfloat16) * 0.05)(B, Sq, D)), 'k_cache': _w((lambda *s: torch.randn(*s, dtype=torch.bfloat16) * 0.8)(B, Hkv, Sk, Dh)), 'v_cache': _w((lambda *s: torch.randn(*s, dtype=torch.bfloat16) * 3.2)(B, Hkv, Sk, Dh)), 'wq': _w((lambda *s: torch.randn(*s, dtype=torch.bfloat16) * 0.8)(D, Hq * Dh) * D ** (-0.5)), 'wo': _w((lambda *s: torch.randn(*s, dtype=torch.bfloat16) * 3.2)(Hq * Dh, D) * (Hq * Dh) ** (-0.5))}
    _A_in = _A_setup()

    def _B_setup():
        B, S, D, F = (1, 2048, 512, 1376)
        return {'x': _w((lambda *s: torch.randn(*s, dtype=torch.bfloat16) * 0.05)(B, S, D)), 'w_gate': _w((lambda *s: torch.randn(*s, dtype=torch.bfloat16) * 3.2)(D, F) * D ** (-0.5)), 'w_up': _w((lambda *s: torch.randn(*s, dtype=torch.bfloat16) * 3.2)(D, F) * D ** (-0.5)), 'w_down': _w((lambda *s: torch.randn(*s, dtype=torch.bfloat16) * 3.2)(F, D) * F ** (-0.5))}
    _B_in = _B_setup()
    return {'A_x': _A_in['x'], 'A_k_cache': _A_in['k_cache'], 'A_v_cache': _A_in['v_cache'], 'A_wq': _A_in['wq'], 'A_wo': _A_in['wo'], 'B_x': _B_in['x'], 'B_w_gate': _B_in['w_gate'], 'B_w_up': _B_in['w_up'], 'B_w_down': _B_in['w_down'], 'c': _w((lambda *s: torch.randn(*s, dtype=torch.bfloat16) * 0.4)(1, 512) * 8.0), 'w_mod': _w((lambda *s: torch.randn(*s, dtype=torch.bfloat16) * 0.4)(512, 6 * 512) * 512 ** (-0.5) * 8.0)}

def reference(A_x, A_k_cache, A_v_cache, A_wq, A_wo, B_x, B_w_gate, B_w_up, B_w_down, c, w_mod):

    def _A_ref(x, k_cache, v_cache, wq, wo):
        B, Sq, D = x.shape
        Hq, Dh = (32, 128)
        Hkv = k_cache.shape[1]
        rep = Hq // Hkv
        q = (lambda x, *d: x.permute(*d))((x @ wq).reshape(B, Sq, Hq, Dh), 0, 2, 1, 3)
        k = (lambda x, n, axis: torch.repeat_interleave(x, n, dim=axis))(k_cache, rep, axis=1)
        v = (lambda x, n, axis: torch.repeat_interleave(x, n, dim=axis))(v_cache, rep, axis=1)
        scores = torch.einsum('bhqd,bhkd->bhqk', q, k) * Dh ** (-0.5)
        p = _softmax(scores, axis=-1)
        o = torch.einsum('bhqk,bhkd->bhqd', p, v)
        return (lambda x, *d: x.permute(*d))(o, 0, 2, 1, 3).reshape(B, Sq, Hq * Dh) @ wo

    def _B_ref(x, w_gate, w_up, w_down):
        g = torch.einsum('bsd,df->bsf', x, w_gate)
        u = torch.einsum('bsd,df->bsf', x, w_up)
        h = g * u
        return torch.einsum('bsf,fd->bsd', h, w_down)
    x = A_x
    mod = (_silu(c) @ w_mod).reshape(c.shape[0], 6, 1, -1)
    sa, ca, ga, sb, cb, gb = (mod[:, 0].clone(), mod[:, 1].clone(), mod[:, 2].clone(), mod[:, 3].clone(), mod[:, 4].clone(), mod[:, 5].clone())
    h = _layernorm(x, axis=-1) * (1 + ca) + sa
    x = x + ga * _A_ref(h, A_k_cache, A_v_cache, A_wq, A_wo)
    h = _layernorm(x, axis=-1) * (1 + cb) + sb
    x = x + gb * _B_ref(h, B_w_gate, B_w_up, B_w_down)
    return x
```

```python
class Asm:
    def __init__(self):
        self.lines = []
    def __call__(self, s):
        for l in s.split('\n'):
            l = l.strip()
            if l:
                self.lines.append(('' if l.endswith(':') or l.startswith('.') else '    ') + l)
    def ext(self, lst):
        for l in lst:
            self(l)
    def text(self):
        return '\n'.join(self.lines) + '\n'

def v(i, n=1):
    return f'v{i}' if n == 1 else f'v[{i}:{i+n-1}]'
def a(i, n=1):
    return f'a{i}' if n == 1 else f'a[{i}:{i+n-1}]'
def s(i, n=1):
    return f's{i}' if n == 1 else f's[{i}:{i+n-1}]'

def kernel_begin(A, name):
    A(f'.globl {name}')
    A('.p2align 8')
    A(f'.type {name},@function')
    A(f'{name}:')

def kernel_desc(name, vgpr, sgpr, accum):
    return f'''.amdhsa_kernel {name}
  .amdhsa_next_free_vgpr {vgpr}
  .amdhsa_next_free_sgpr {sgpr}
  .amdhsa_accum_offset {accum}
  .amdhsa_group_segment_fixed_size 0
  .amdhsa_kernarg_size 112
  .amdhsa_user_sgpr_count 2
  .amdhsa_user_sgpr_kernarg_segment_ptr 1
  .amdhsa_system_sgpr_workgroup_id_x 1
.end_amdhsa_kernel
'''

def srd(A, d, blo, bhi, nrec):
    if blo != f's{d}':
        A(f's_mov_b32 s{d}, {blo}')
    A(f's_and_b32 s{d+1}, {bhi}, 0xffff')
    A(f's_mov_b32 s{d+2}, {nrec}')
    A(f's_mov_b32 s{d+3}, 0x20000')

HEADER = '''; Kernarg layout for this problem (112 bytes, ptrs only, base s[0:1]):
'''
```

```python
from common import *
from gemms import setup256, mk256, lane_parts

VKADDR = 4
VVADDR = 12
VKDMA = 20
VVDMA = 22
VL16 = 24
VL16Q = 25
VL = 26
VT = 30
VCHK = 38
VTMP = 40
VQ = 48
VS = 112
VP = 176
VNM = 208
VWADDR = 240
VWDMA = 248
def Q(qb, ds): return VQ + (qb*8+ds)*4
def S(par, qb): return VS + (par*2+qb)*16
def P(par, qb, ks): return VP + ((par*2+qb)*2+ks)*4
def NM(qb): return VNM + qb*16
def QACC(qb, dt): return VS + (qb*4+dt)*16
def L(par, qb): return VL + par*2+qb
def O(qb, dt): return (qb*4+dt)*16
def KF(ds): return 128 + ds*4
def VF(i): return 160 + i*4

SK, SV, SW, SH, SO = 16, 20, 24, 28, 32
SOFF, SM0, SCNT, STHR = 36, 37, 38, 39
OFFS = 16.0
THR = 2.0**24

def softmax_ops(par):
    ops = []
    elems = [(qb, ks, pr) for ks in range(2) for pr in range(4) for qb in range(2)]
    first = [True, True]
    pend = []
    ti = 0
    for (qb, ks, pr) in elems:
        r0 = ks*8 + pr*2
        t0 = VT + (ti % 8); t1 = VT + ((ti+1) % 8); ti += 2
        e0 = (f'v_exp_f32 v{t0}, v{S(par,qb)+r0}', 8)
        e1 = (f'v_exp_f32 v{t1}, v{S(par,qb)+r0+1}', 8)
        src = L(par^1, qb) if first[qb] else L(par, qb)
        first[qb] = False
        a0 = (f'v_add_f32 v{L(par,qb)}, v{src}, v{t0}', 4)
        a1 = (f'v_add_f32 v{L(par,qb)}, v{L(par,qb)}, v{t1}', 4)
        c = (f'v_cvt_pk_bf16_f32 v{P(par,qb,ks)+pr}, v{t0}, v{t1}', 4)
        ops.append(e0)
        if pend: ops.append(pend[0])
        ops.append(e1)
        if pend: ops += pend[1:]
        pend = [a0, a1, c]
    ops += pend
    return ops

def kread(ds, slot):
    return f'ds_read_b128 {a(KF(ds),4)}, v{VKADDR+ds} offset:{slot*16384}'
def vread(i, j2, slot):
    ks, dt = i >> 2, i & 3
    return f'ds_read_b64_tr_b16 {a(VF(i)+2*j2,2)}, v{VVADDR+dt} offset:{slot*16384 + (2*ks+j2)*4096 + 2048}'
def dma(n, o):
    if n < 2:
        return f'buffer_load_dwordx4 v{VKDMA+n}, {s(SK,4)}, s{SOFF} offen offset:{n*1024} {o.kvflags} lds'
    return f'buffer_load_dwordx4 v{VVDMA}, {s(SV,4)}, s{SOFF} offen offset:{n*1024} {o.kvflags} lds'
def qk_mfma(g, par):
    ds, qb = g >> 1, g & 1
    c = v(NM(qb),16) if ds == 0 else v(S(par,qb),16)
    return f'{MF} {v(S(par,qb),16)}, {a(KF(ds),4)}, {v(Q(qb,ds),4)}, {c}'
def pv_mfma(idx, par, zero=False):
    ks, dt, qb = idx >> 3, (idx >> 1) & 3, idx & 1
    c = '0' if (zero and ks == 0) else a(O(qb,dt),16)
    return f'{MF} {a(O(qb,dt),16)}, {a(VF(ks*4+dt),4)}, {v(P(par,qb,ks),4)}, {c}'

def distribute(ops, gaps, fixed_cost):
    tot = sum(c for _, c in ops) + sum(fixed_cost[g] for g in gaps)
    per = tot / len(gaps)
    out = {g: [] for g in gaps}
    i = 0; cum = 0.0
    for n, g in enumerate(gaps):
        cum += fixed_cost[g]
        target = per * (n + 1)
        while i < len(ops) and (cum + ops[i][1] / 2 <= target or n == len(gaps) - 1):
            out[g].append(ops[i][0]); cum += ops[i][1]; i += 1
    return out

def step_fixed(t, o, vread_on=True, kread_on=True, dma_on=True, vmn=8, bar=True):
    F = {g: [] for g in range(32)}
    slot_cur = (t + 1) % 4
    slot_nxt = (t + 2) % 4
    if vread_on:
        n = 0
        for i in range(8):
            for j2 in range(2):
                F[o.vgaps[n]].append((vread(i, j2, slot_cur), o.ldscost)); n += 1
    if kread_on:
        for ds in range(8):
            F[o.kgaps[ds]].append((kread(ds, slot_nxt), o.ldscost))
        F[31].append(('s_waitcnt lgkmcnt(0)', 4))
    F[15].append((f's_waitcnt vmcnt({vmn}) lgkmcnt(0)' if bar else 's_waitcnt lgkmcnt(0)', 4))
    if bar: F[15].append(('s_barrier', 4))
    if dma_on:
        g0 = min(o.dma_gaps)
        F[g0-1].append((f's_add_u32 m0, s{SM0}, {slot_cur*16384}', 4))
        for n in range(4):
            F[o.dma_gaps[n]].append((dma(n, o), o.dmacost))
        F[max(o.dma_gaps)+1].append((f's_add_u32 s{SOFF}, s{SOFF}, 8192', 4))
    return F

def plan_softmax(par, F, Fn):
    gaps = [('a', g) for g in range(24, 32)] + [('b', g) for g in range(0, 22)]
    fc = {k: sum(c for _, c in (F if k[0] == 'a' else Fn)[k[1]]) for k in gaps}
    return distribute(softmax_ops(par), gaps, fc)

def emit_step(A, t, o, tag, zero_o=False, no_pv=False, no_qk=False, sm_cur=True, sm_next=True, carry=None, fx={}, tail=[]):
    par = t & 1
    F = step_fixed(t, o, **fx)
    if sm_cur:
        F[22].append((f'v_max_f32 v{VCHK}, v{L(par,0)}, v{L(par,1)}', 4))
        F[23].append((f'v_cmp_lt_f32 vcc, s{STHR}, v{VCHK}', 4))
    nxt = plan_softmax(par ^ 1, step_fixed(t, o), step_fixed(t + 1, o)) if sm_next else None
    for g in range(32):
        if g < 16:
            if not no_qk: A(qk_mfma(g, par ^ 1))
        else:
            if not no_pv: A(pv_mfma(g - 16, par ^ 1, zero_o))
        pre = [x for x, _ in F[g] if not (x.startswith('s_waitcnt') or x.startswith('s_barrier'))]
        post = [x for x, _ in F[g] if (x.startswith('s_waitcnt') or x.startswith('s_barrier'))]
        if g == 24 and sm_cur:
            A(f's_cbranch_vccnz L_rare_{tag}')
            A(f'L_back_{tag}:')
            if no_pv: A('s_nop 7')
        sm = []
        if g < 22 and carry is not None: sm = carry[('b', g)]
        if g >= 24 and nxt is not None: sm = nxt[('a', g)]
        A.ext(sm[:1]); A.ext(pre); A.ext(sm[1:])
        if g == 30: A.ext(tail)
        A.ext(post)
    return nxt

def emit_rowmax(A, par, qb, dst, tmp):
    b = S(par, qb)
    A(f'v_max3_f32 v{dst}, v{b}, v{b+1}, v{b+2}')
    for r in range(3, 15, 2):
        A(f'v_max3_f32 v{dst}, v{dst}, v{b+r}, v{b+r+1}')
    A(f'v_max_f32 v{dst}, v{dst}, v{b+15}')
    A(f'v_mov_b32 v{tmp}, v{dst}')
    A('s_nop 1')
    A(f'v_permlane32_swap_b32 v{dst}, v{tmp}')
    A('s_nop 1')
    A(f'v_max_f32 v{dst}, v{dst}, v{tmp}')

def emit_rare_sub(A, par, name):
    A(f'L_raresub{par}_{name}:')
    A('s_nop 15'); A('s_nop 15')
    for qb in range(2):
        d, tm, f = VTMP, VTMP + 1, VTMP + 2
        emit_rowmax(A, par, qb, d, tm)
        A(f'v_ceil_f32 v{d}, v{d}')
        A(f'v_add_f32 v{d}, {f2u(OFFS)}, v{d}')
        A(f'v_max_f32 v{d}, 0, v{d}')
        A(f'v_exp_f32 v{f}, -v{d}')
        for r in range(16):
            A(f'v_sub_f32 v{NM(qb)+r}, v{NM(qb)+r}, v{d}')
            A(f'v_sub_f32 v{S(par,qb)+r}, v{S(par,qb)+r}, v{d}')
            A(f'v_sub_f32 v{S(par^1,qb)+r}, v{S(par^1,qb)+r}, v{d}')
        A(f'v_mul_f32 v{L(par^1,qb)}, v{L(par^1,qb)}, v{f}')
        for dt in range(4):
            for r in range(16):
                A(f'v_accvgpr_read_b32 v{tm}, a{O(qb,dt)+r}')
                A(f'v_mul_f32 v{tm}, v{tm}, v{f}')
                A(f'v_accvgpr_write_b32 a{O(qb,dt)+r}, v{tm}')
        for r in range(4):
            p = P(par ^ 1, qb, 1) + r
            A(f'v_lshlrev_b32 v{tm}, 16, v{p}')
            A(f'v_and_b32 v{p}, 0xffff0000, v{p}')
            A(f'v_mul_f32 v{tm}, v{tm}, v{f}')
            A(f'v_mul_f32 v{p}, v{p}, v{f}')
            A(f'v_cvt_pk_bf16_f32 v{p}, v{tm}, v{p}')
    A.ext([x for x, _ in softmax_ops(par)])
    A('s_nop 1')
    A('s_setpc_b64 s[46:47]')

def gen_attn(A, name, o):
    kernel_begin(A, name)
    A('s_cmp_ge_u32 s2, 256')
    A(f's_cbranch_scc1 L_end_{name}')
    A('s_load_dwordx4 s[4:7], s[0:1], 8')
    A('s_load_dwordx2 s[8:9], s[0:1], 24')
    A('s_load_dwordx2 s[10:11], s[0:1], 104')
    stamp(A, o, 0)
    A(f'''
    s_and_b32 s12, s2, 7
    s_bfe_u32 s14, s2, 0x20003
    s_lshr_b32 s13, s2, 5
    s_lshl_b32 s12, s12, 2
    s_add_u32 s12, s12, s14
    v_lshrrev_b32 v1, 6, v0
    v_and_b32 v0, 63, v0
    v_readfirstlane_b32 s15, v1
    v_lshlrev_b32 v{VL16}, 4, v0
    v_add_u32 v{VL16Q}, 0x8000, v{VL16}
    ''')
    setup256(A, VTMP, VWADDR, VWDMA, 32768, 8192, 's15')
    A(f'''
    s_lshl_b32 s48, s15, 11
    s_lshl_b32 s49, s13, 1
    s_lshr_b32 s50, s14, 1
    s_add_u32 s49, s49, s50
    s_mov_b32 s50, s49
    s_lshl_b32 s41, s13, 2
    s_add_u32 s41, s41, s15
    s_waitcnt lgkmcnt(0)
    s_lshl_b32 s40, s12, 8
    s_add_u32 s{SW}, s8, s40
    s_addc_u32 s{SW+1}, s9, 0
    s_lshl_b32 s40, s41, 16
    s_add_u32 s40, s40, {H_OFF}
    s_add_u32 s{SH}, s10, s40
    s_addc_u32 s{SH+1}, s11, 0
    ''')
    srd(A, SW, f's{SW}', f's{SW+1}', 511*8192 + 256)
    srd(A, SH, f's{SH}', f's{SH+1}', 65536)
    def late_setup():
        A(f'''
        s_lshl_b32 s40, s12, 19
        s_add_u32 s{SK}, s4, s40
        s_addc_u32 s{SK+1}, s5, 0
        s_add_u32 s{SV}, s6, s40
        s_addc_u32 s{SV+1}, s7, 0
        s_sub_u32 s{SV}, s{SV}, {2048+16384}
        s_subb_u32 s{SV+1}, s{SV+1}, 0
        s_lshl_b32 s40, s41, 19
        s_lshl_b32 s42, s12, 13
        s_add_u32 s40, s40, s42
        s_add_u32 s40, s40, {O_OFF}
        s_add_u32 s{SO}, s10, s40
        s_addc_u32 s{SO+1}, s11, 0
        ''')
        srd(A, SK, f's{SK}', f's{SK+1}', 524288)
        srd(A, SV, f's{SV}', f's{SV+1}', 524288 + 2048 + 16384)
        srd(A, SO, f's{SO}', f's{SO+1}', 262144 + 8192)
        A(f's_lshl_b32 s{SM0}, s15, 12')
        A(f's_mov_b32 s{STHR}, {f2u(THR)}')
        A(f'''
        v_lshrrev_b32 v1, 4, v0
        v_and_b32 v2, 15, v0
        v_lshlrev_b32 v3, 2, v1
        v_xor_b32 v3, v3, v2
        v_lshlrev_b32 v3, 4, v3
        v_lshl_add_u32 v{VVDMA}, v1, 8, v3
        v_add_u32 v{VVDMA}, s48, v{VVDMA}
        s_and_b32 s42, s15, 1
        s_lshl_b32 s42, s42, 3
        ''')
        for j in range(2):
            A(f'''
            v_add_u32 v3, {4*j}, v1
            v_add_u32 v3, s42, v3
            v_xor_b32 v3, v3, v2
            v_lshlrev_b32 v3, 4, v3
            v_lshl_add_u32 v{VKDMA+j}, v1, 8, v3
            v_add_u32 v{VKDMA+j}, s48, v{VKDMA+j}
            ''')
        A(f'''
        v_and_b32 v1, 31, v0
        v_lshrrev_b32 v2, 5, v0
        v_lshrrev_b32 v3, 3, v1
        v_lshlrev_b32 v3, 12, v3
        v_and_b32 v{VTMP}, 7, v1
        v_lshl_add_u32 v3, v{VTMP}, 8, v3
        v_and_b32 v{VTMP}, 15, v1
        v_xor_b32 v{VTMP}, v{VTMP}, v2
        v_lshlrev_b32 v{VTMP}, 4, v{VTMP}
        ''')
        for ds in range(8):
            A(f'v_xor_b32 v{VKADDR+ds}, {32*ds}, v{VTMP}')
            A(f'v_add_u32 v{VKADDR+ds}, v{VKADDR+ds}, v3')
        t = VTMP
        lane_parts(A, t)
        A(f'''
        v_lshl_add_u32 v{t+4}, v{t+3}, 2, v{t}
        v_lshl_add_u32 v{t+1}, v{t+2}, 5, v{t+1}
        v_lshl_add_u32 v{t+1}, v{t+4}, 8, v{t+1}
        ''')
        for dt in range(4):
            A(f'v_xor_b32 v{t+4}, {dt}, v{t}')
            A(f'v_lshl_add_u32 v{VVADDR+dt}, v{t+4}, 6, v{t+1}')
    vm = VM()
    hf = lambda c, ksl, qb: ((c*2+ksl)*2+qb)*4
    wf = lambda b, ksl, t: VQ + ((b*2+ksl)*4+t)*4
    wread, iw, ia = mk256(VWADDR, VWDMA, 32768, 8192, SW, SH, VL16, VL16Q, 48, 49, 50, 43, 44, hf, o.wflags)
    def kvwin(win, with_v):
        Lx = [(f's_add_u32 m0, s{SM0}, {((win+1)%4)*16384}', None), (f's_mov_b32 s{SOFF}, {(win+1)*8192}', None)]
        return Lx + [(dma(n, o), ('kv', win)) for n in range(4 if with_v else 2)]
    def extra(c):
        if c == 9: return kvwin(-1, False)
        if c == 11: return kvwin(0, False)
        if c == 14: return kvwin(1, True)
        if c == 15: return kvwin(2, True)
        return []
    proj_core(A, vm, 4, QACC, wf, hf, wread, iw, ia, D=o.projD, extra=extra, pre_hook=late_setup)
    stamp(A, o, 1)
    n = vm.need(lambda x: x[0] == 'kv' and x[1] <= 0)
    A(f's_waitcnt vmcnt({n})')
    A('s_barrier')
    for ds in range(8): A(kread(ds, 0))
    A('s_nop 7')
    for qb in range(2):
        for dt in range(4):
            for r in range(0, 16, 2):
                A(f'v_cvt_pk_bf16_f32 v{Q(qb, 2*dt + (r>>3)) + ((r&7)>>1)}, v{QACC(qb,dt)+r}, v{QACC(qb,dt)+r+1}')
    A('s_waitcnt lgkmcnt(0)')
    A('s_barrier')
    for g in range(16):
        ds, qb = g >> 1, g & 1
        c_ = '0' if ds == 0 else v(S(0,qb),16)
        A(f'{MF} {v(S(0,qb),16)}, {a(KF(ds),4)}, {v(Q(qb,ds),4)}, {c_}')
        if qb == 1: A(kread(ds, 1))
        if g == 0:
            A(f's_add_u32 m0, s{SM0}, 0')
            A(f's_mov_b32 s{SOFF}, {4*8192}')
        if g in (2, 4, 6, 8): A(dma(g//2 - 1, o))
    A(f's_add_u32 s{SOFF}, s{SOFF}, 8192')
    A('s_nop 10')
    for qb in range(2):
        d, tm = VTMP, VTMP + 1
        emit_rowmax(A, 0, qb, d, tm)
        A(f'v_ceil_f32 v{d}, v{d}')
        A(f'v_add_f32 v{d}, {f2u(OFFS)}, v{d}')
        for r in range(16):
            A(f'v_sub_f32 v{NM(qb)+r}, 0, v{d}')
            A(f'v_sub_f32 v{S(0,qb)+r}, v{S(0,qb)+r}, v{d}')
        A(f'v_mov_b32 v{L(1,qb)}, 0')
    carry = plan_softmax(0, step_fixed(3, o), step_fixed(0, o))
    for g in range(24, 32): A.ext(carry[('a', g)])
    A('s_waitcnt lgkmcnt(0)')
    stamp(A, o, 2)
    rare = []
    carry = emit_step(A, 0, o, 'p0', no_pv=True, carry=carry, sm_cur=False, fx=dict(vread_on=False))
    for t in (1, 2, 3):
        carry = emit_step(A, t, o, f'p{t}', carry=carry, zero_o=(t == 1))
        rare.append((t, f'p{t}'))
    A(f's_mov_b32 s{SCNT}, 14')
    A('.p2align 6')
    A(f'L_loop_{name}:')
    n0 = len(A.lines)
    for t in range(4):
        tail = [f's_sub_u32 s{SCNT}, s{SCNT}, 1', f's_cmp_lg_u32 s{SCNT}, 0'] if t == 3 else []
        carry = emit_step(A, t, o, f'l{t}', carry=carry, tail=tail)
        rare.append((t, f'l{t}'))
    if o.drop:
        import re
        A.lines[n0:] = [l for l in A.lines[n0:] if not re.search(o.drop, l)]
    A(f's_cbranch_scc1 L_loop_{name}')
    carry = emit_step(A, 0, o, 'e0', carry=carry); rare.append((0, 'e0'))
    carry = emit_step(A, 1, o, 'e1', carry=carry, fx=dict(dma_on=False)); rare.append((1, 'e1'))
    carry = emit_step(A, 2, o, 'e2', carry=carry, fx=dict(dma_on=False, vmn=4, kread_on=False)); rare.append((2, 'e2'))
    carry = emit_step(A, 3, o, 'e3', no_qk=True, sm_next=False, carry=carry, fx=dict(dma_on=False, vmn=0, kread_on=False)); rare.append((3, 'e3'))
    emit_step(A, 0, o, 'e4', no_qk=True, sm_cur=False, sm_next=False, carry=None, fx=dict(dma_on=False, kread_on=False, bar=False))
    stamp(A, o, 3)
    for qb in range(2):
        l, tm = L(1, qb), VTMP
        A(f'v_mov_b32 v{tm}, v{l}')
        A('s_nop 1')
        A(f'v_permlane32_swap_b32 v{l}, v{tm}')
        A('s_nop 1')
        A(f'v_add_f32 v{l}, v{l}, v{tm}')
        A(f'v_rcp_f32 v{l}, v{l}')
    A('s_nop 3')
    n = 0
    for dt in range(4):
        for qb in range(2):
            b = VS + (n % 4) * 16
            pk = VP + ((n % 4) * 8); n += 1
            A(f's_mov_b32 s44, {qb*262144 + (dt>>1)*4096}')
            for r in range(16): A(f'v_accvgpr_read_b32 v{b+r}, a{O(qb,dt)+r}')
            for r in range(16): A(f'v_mul_f32 v{b+r}, v{b+r}, v{L(1,qb)}')
            for r in range(0, 16, 2): A(f'v_cvt_pk_bf16_f32 v{pk+r//2}, v{b+r}, v{b+r+1}')
            for hh in range(2):
                off = (dt*2+hh)*1024
                A(f'buffer_store_dwordx4 {v(pk+4*hh,4)}, v{VL16}, {s(SO,4)}, s44 offen offset:{off & 4095}')
    if o.timing: A('s_waitcnt vmcnt(0)')
    stamp(A, o, 4)
    dump_stamps(A, o, 5, 's10', 's11', 's15', 1)
    A(f'L_end_{name}:')
    A('s_endpgm')
    for (t, tag) in rare:
        A(f'L_rare_{tag}:')
        A(f's_call_b64 s[46:47], L_raresub{t&1}_{name}')
        A(f's_branch L_back_{tag}')
    emit_rare_sub(A, 0, name)
    emit_rare_sub(A, 1, name)
    return (name, 256, 256, 163840, 512, 96, 256)
```

```python
from asmlib import *
import struct
MOD_OFF = 0
H_OFF = 0x10000
O_OFF = 0x400000
PART_OFF = 0x1400000
X1_OFF = 0x2400000
H2_OFF = 0x2600000
A_OFF = 0x2800000
DBG_OFF = 0x8000000
MF = 'v_mfma_f32_32x32x16_bf16'
def f2u(x): return '0x%08x' % struct.unpack('<I', struct.pack('<f', x))[0]

class VM:
    def __init__(self): self.q = []
    def add(self, tag): self.q.append(tag)
    def need(self, pred):
        idx = [i for i, x in enumerate(self.q) if pred(x)]
        if not idx: return None
        n = len(self.q) - 1 - max(idx)
        assert n <= 63
        return n

def stamp(A, o, i):
    if o.timing:
        A(f's_memtime s[{64+4*i}:{65+4*i}]')
        A(f's_memrealtime s[{66+4*i}:{67+4*i}]')

def dump_stamps(A, o, n, ws_lo, ws_hi, wave_sgpr, kidx, wpw=4):
    if not o.timing: return
    A(f'''
    s_waitcnt vmcnt(0) lgkmcnt(0)
    s_mul_i32 s60, s2, {wpw}
    s_add_u32 s60, s60, {wave_sgpr}
    s_lshl_b32 s60, s60, 7
    s_add_u32 s60, s60, {DBG_OFF + kidx*0x100000}
    s_add_u32 s60, {ws_lo}, s60
    s_addc_u32 s61, {ws_hi}, 0
    s_and_b32 s61, s61, 0xffff
    s_mov_b32 s62, 128
    s_mov_b32 s63, 0x20000
    v_mov_b32 v1, 0
    ''')
    for i in range(4*n):
        A(f'v_mov_b32 v2, s{64+i}')
        A(f'buffer_store_dword v2, v1, s[60:63], 0 offen offset:{4*i}')

def spread(A, mfmas, fillers):
    for g, m in enumerate(mfmas):
        A(m)
        A.ext(fillers.get(g, []))

def proj_core(A, vm, ntiles, acc, wf, hf, wread, issue_w, issue_act, D=2, extra=None, nch=16, wgran=1, pre_hook=None):
    def emit(lst):
        for ins, tag in lst:
            A(ins)
            if tag is not None: vm.add(tag)
    def group(c):
        g = []
        if c + 1 < nch: g += issue_w(c + 1)
        if c < nch: g += issue_act(c)
        return g
    emit(issue_w(0))
    for c in range(D): emit(group(c))
    if pre_hook: pre_hook()
    A(f's_waitcnt vmcnt({vm.need(lambda x: x[0] == "w" and x[1] <= 0)})')
    A('s_barrier')
    def reads(c):
        return [wread(c, ksl, t, j2, wf(c & 1, ksl, t) + 2*j2) for ksl in range(2) for t in range(ntiles) for j2 in range(2)]
    A.ext(reads(0))
    nm = 4*ntiles
    for c in range(nch):
        n = vm.need(lambda x: (x[0] == 'w' and x[1] <= c + 1) or (x[0] == 'a' and x[1] <= c))
        A(f's_waitcnt vmcnt({n}) lgkmcnt(0)')
        if c + 1 < nch: A('s_barrier')
        mf = []
        for ksl in range(2):
            for t in range(ntiles):
                for qb in range(2):
                    cc = '0' if (c == 0 and ksl == 0) else v(acc(qb, t), 16)
                    mf.append(f'{MF} {v(acc(qb,t),16)}, {v(wf(c&1,ksl,t),4)}, {a(hf(c,ksl,qb),4)}, {cc}')
        rd = reads(c + 1) if c + 1 < nch else []
        vg = group(c + D) if c + D < nch else []
        if extra: vg = vg + extra(c)
        units = []; cur = []
        for ins, tag in vg:
            cur.append((ins, tag))
            if tag is not None: units.append(cur); cur = []
        if cur:
            if units: units[-1] += cur
            else: units.append(cur)
        F = {g: [] for g in range(nm)}
        ng = nm - 3
        for i, r in enumerate(rd): F[i * ng // len(rd)].append((r, None))
        for i, u in enumerate(units): F[(i * nm // len(units)) if len(units) else 0] += u
        for g in range(nm):
            A(mf[g]); emit(F[g])
```

```python
from common import *
from small import unpack8

def lane_parts(A, t):
    A(f'''
    v_bfe_u32 v{t}, v0, 2, 2
    v_and_b32 v{t+1}, 1, v0
    v_bfe_u32 v{t+2}, v0, 1, 1
    v_lshlrev_b32 v{t+1}, 4, v{t+1}
    v_lshl_add_u32 v{t+1}, v{t+2}, 3, v{t+1}
    v_bfe_u32 v{t+2}, v0, 4, 1
    v_lshrrev_b32 v{t+3}, 5, v0
    ''')

def setup256(A, t, waddr, wdma, base, pitch, swave):
    lane_parts(A, t)
    A(f'''
    v_lshl_add_u32 v{t+4}, v{t+3}, 3, v{t}
    v_lshl_add_u32 v{t+1}, v{t+2}, 5, v{t+1}
    v_lshl_add_u32 v{t+1}, v{t+4}, 8, v{t+1}
    v_add_u32 v{t+1}, {base}, v{t+1}
    ''')
    for dt in range(4):
        A(f'v_xor_b32 v{t+4}, {dt}, v{t}')
        A(f'v_lshl_add_u32 v{waddr+dt}, v{t+4}, 6, v{t+1}')
        A(f'v_add_u32 v{waddr+4+dt}, 0x10000, v{waddr+dt}')
    lp = pitch.bit_length() - 1
    A(f'''
    v_lshrrev_b32 v{t}, 4, v0
    v_and_b32 v{t+1}, 15, v0
    v_lshlrev_b32 v{t+2}, 2, v{t}
    v_xor_b32 v{t+2}, v{t+2}, v{t+1}
    s_lshl_b32 s40, {swave}, 3
    v_add_u32 v{t}, s40, v{t}
    v_lshlrev_b32 v{t}, {lp}, v{t}
    v_lshl_add_u32 v{wdma}, v{t+2}, 4, v{t}
    v_add_u32 v{wdma+1}, {4*pitch - 1024}, v{wdma}
    ''')

def mk256(waddr, wdma, base, pitch, SW, SA, vl16, vl16q, sM, sCW, sCA, sWoff, sAoff, hf, wflags=''):
    def wread(c, ksl, t, j2, dst):
        off = c*8192 + (16*ksl + 4*j2)*256
        return f'ds_read_b64_tr_b16 {v(dst,2)}, v{waddr + t + (4 if off >= 65536 else 0)} offset:{off & 65535}'
    def issue_w(c):
        lp = (32*pitch).bit_length() - 1
        return [(f's_add_u32 m0, s{sM}, {base + c*8192}', None),
                (f's_lshl_b32 s{sWoff}, s{sCW}, {lp}', None),
                (f'buffer_load_dwordx4 v{wdma}, {s(SW,4)}, s{sWoff} offen {wflags} lds', ('w', c)),
                (f'buffer_load_dwordx4 v{wdma+1}, {s(SW,4)}, s{sWoff} offen offset:1024 {wflags} lds', ('w', c)),
                (f's_add_u32 s{sCW}, s{sCW}, 1', None),
                (f's_and_b32 s{sCW}, s{sCW}, 15', None)]
    issue_act = mk_act(SA, vl16, vl16q, sCA, sAoff, hf)
    return wread, issue_w, issue_act

def mk_act(SA, vl16, vl16q, sCA, sAoff, hf):
    def issue_act(c):
        L = [(f's_lshl_b32 s{sAoff}, s{sCA}, 11', None)]
        for ksl in range(2):
            for qb in range(2):
                L.append((f'buffer_load_dwordx4 {a(hf(c,ksl,qb),4)}, v{vl16q if qb else vl16}, {s(SA,4)}, s{sAoff} offen offset:{ksl*1024}', ('a', c)))
        L += [(f's_add_u32 s{sCA}, s{sCA}, 1', None), (f's_and_b32 s{sCA}, s{sCA}, 15', None)]
        return L
    return issue_act

def gen_oproj(A, name, o):
    kernel_begin(A, name)
    SW, SA, SP = 16, 20, 24
    A(f'''
    s_cmp_ge_u32 s2, 256
    s_cbranch_scc1 L_end_{name}
    s_load_dwordx2 s[4:5], s[0:1], 32
    s_load_dwordx2 s[12:13], s[0:1], 104
    ''')
    stamp(A, o, 0)
    A(f'''
    v_lshrrev_b32 v1, 6, v0
    v_and_b32 v0, 63, v0
    v_readfirstlane_b32 s15, v1
    s_and_b32 s33, s2, 7
    s_lshr_b32 s34, s2, 5
    s_bfe_u32 s35, s2, 0x20003
    v_lshlrev_b32 v20, 4, v0
    v_add_u32 v21, 0x40000, v20
    ''')
    setup256(A, 2, 10, 18, 0, 1024, 's15')
    A(f'''
    s_lshl_b32 s36, s15, 11
    s_lshl_b32 s37, s34, 1
    s_mov_b32 s38, s37
    s_lshl_b32 s41, s34, 2
    s_add_u32 s41, s41, s15
    s_waitcnt lgkmcnt(0)
    s_lshl_b32 s40, s33, 19
    s_lshl_b32 s42, s35, 8
    s_add_u32 s40, s40, s42
    s_add_u32 s{SW}, s4, s40
    s_addc_u32 s{SW+1}, s5, 0
    s_lshl_b32 s40, s41, 19
    s_lshl_b32 s42, s33, 15
    s_add_u32 s40, s40, s42
    s_add_u32 s40, s40, {O_OFF}
    s_add_u32 s{SA}, s12, s40
    s_addc_u32 s{SA+1}, s13, 0
    s_lshl_b32 s40, s33, 21
    s_lshl_b32 s42, s41, 16
    s_add_u32 s40, s40, s42
    s_lshl_b32 s42, s35, 13
    s_add_u32 s40, s40, s42
    s_add_u32 s40, s40, {PART_OFF}
    s_add_u32 s{SP}, s12, s40
    s_addc_u32 s{SP+1}, s13, 0
    ''')
    srd(A, SW, f's{SW}', f's{SW+1}', 511*1024 + 256)
    srd(A, SA, f's{SA}', f's{SA+1}', 0x40000 + 32768)
    srd(A, SP, f's{SP}', f's{SP+1}', 32768 + 8192)
    acc = lambda qb, t: 96 + (qb*4+t)*16
    wf = lambda b, ksl, t: 32 + ((b*2+ksl)*4+t)*4
    hf = lambda c, ksl, qb: ((c*2+ksl)*2+qb)*4
    vm = VM()
    wread, iw, ia = mk256(10, 18, 0, 1024, SW, SA, 20, 21, 36, 37, 38, 43, 44, hf, o.wflags)
    proj_core(A, vm, 4, acc, wf, hf, wread, iw, ia, D=o.projD)
    stamp(A, o, 1)
    A('s_nop 15')
    n = 0
    for qb in range(2):
        A(f's_mov_b32 s44, {qb*32768}')
        A(f's_mov_b32 s45, {qb*32768 + 4096}')
        for t in range(4):
            pk = 32 + (n % 8)*8; n += 1
            for r in range(0, 16, 2): A(f'v_cvt_pk_bf16_f32 v{pk+r//2}, v{acc(qb,t)+r}, v{acc(qb,t)+r+1}')
            for hh in range(2):
                off = (t*2+hh)*1024
                A(f'buffer_store_dwordx4 {v(pk+4*hh,4)}, v20, {s(SP,4)}, s{44+(off>>12)} offen offset:{off & 4095}')
    if o.timing: A('s_waitcnt vmcnt(0)')
    stamp(A, o, 2)
    dump_stamps(A, o, 3, 's12', 's13', 's15', 2)
    A(f'L_end_{name}:')
    A('s_endpgm')
    return (name, 256, 256, 131072, 512, 96, 256)

def gen_glu(A, name, o):
    kernel_begin(A, name)
    SW, SA, SP = 16, 20, 24
    U0 = 49152 + 128
    A(f'''
    s_cmp_ge_u32 s2, 232
    s_cbranch_scc1 L_end_{name}
    s_load_dwordx4 s[4:7], s[0:1], 48
    s_load_dwordx2 s[12:13], s[0:1], 104
    ''')
    stamp(A, o, 0)
    A(f'''
    v_lshrrev_b32 v1, 6, v0
    v_and_b32 v0, 63, v0
    v_readfirstlane_b32 s15, v1
    s_and_b32 s34, s2, 7
    s_lshr_b32 s35, s2, 3
    v_lshlrev_b32 v20, 4, v0
    v_add_u32 v21, 0x8000, v20
    ''')
    lane_parts(A, 2)
    A(f'''
    v_lshl_add_u32 v6, v5, 3, v2
    v_mul_u32_u24 v6, 96, v6
    v_add_u32 v6, v6, v3
    v_mul_u32_u24 v4, {U0}, v4
    v_add_u32 v10, v6, v4
    s_and_b32 s40, s15, 1
    s_mul_i32 s41, s40, {32*2752}
    ''')
    for i in range(3):
        A(f'''
        v_add_u32 v2, {64*i}, v0
        v_mul_u32_u24 v3, 10923, v2
        v_lshrrev_b32 v3, 16, v3
        v_mul_u32_u24 v4, 6, v3
        v_sub_u32 v4, v2, v4
        v_mul_u32_u24 v3, 2752, v3
        v_lshl_add_u32 v3, v4, 4, v3
        v_add_u32 v3, s41, v3
        v_subrev_u32 v{12+i}, {1024*i}, v3
        ''')
    A(f'''
    s_mul_i32 s36, s40, 3072
    s_lshr_b32 s42, s15, 1
    s_mul_i32 s42, s42, {U0}
    s_add_u32 s36, s36, s42
    s_and_b32 s37, s35, 7
    s_lshl_b32 s38, s37, 1
    s_lshl_b32 s41, s34, 2
    s_add_u32 s41, s41, s15
    s_waitcnt lgkmcnt(0)
    s_cmp_ge_u32 s15, 2
    s_cselect_b32 s4, s6, s4
    s_cselect_b32 s5, s7, s5
    s_mul_i32 s40, s35, 96
    s_add_u32 s{SW}, s4, s40
    s_addc_u32 s{SW+1}, s5, 0
    s_sub_u32 s{SW+2}, {512*2752}, s40
    s_and_b32 s{SW+1}, s{SW+1}, 0xffff
    s_mov_b32 s{SW+3}, 0x20000
    s_lshl_b32 s40, s41, 16
    s_add_u32 s40, s40, {H2_OFF}
    s_add_u32 s{SA}, s12, s40
    s_addc_u32 s{SA+1}, s13, 0
    s_mul_i32 s40, s41, {2*86*1024}
    s_mul_i32 s42, s35, 3072
    s_add_u32 s40, s40, s42
    s_add_u32 s40, s40, {A_OFF}
    s_add_u32 s{SP}, s12, s40
    s_addc_u32 s{SP+1}, s13, 0
    ''')
    srd(A, SA, f's{SA}', f's{SA+1}', 65536)
    srd(A, SP, f's{SP}', f's{SP+1}', 86*1024 + 3072)
    acc = lambda qb, t: 96 + (qb*3+t)*16
    wf = lambda b, ksl, t: 32 + ((b*2+ksl)*3+t)*4
    hf = lambda c, ksl, qb: ((c*2+ksl)*2+qb)*4
    def wread(c, ksl, t, j2, dst):
        off = (c*32 + 16*ksl + 4*j2)*96 + 32*t
        return f'ds_read_b64_tr_b16 {v(dst,2)}, v10 offset:{off}'
    def issue_w(c):
        if c & 1: return []
        L = [(f's_add_u32 m0, s36, {c*3072}', None), (f's_mul_i32 s43, s37, {64*2752}', None)]
        for i in range(3):
            L.append((f'buffer_load_dwordx4 v{12+i}, {s(SW,4)}, s43 offen offset:{1024*i} {o.wflags} lds', ('w', c)))
        L += [('s_add_u32 s37, s37, 1', None), ('s_and_b32 s37, s37, 7', None)]
        return L
    vm = VM()
    proj_core(A, vm, 3, acc, wf, hf, wread, issue_w, mk_act(SA, 20, 21, 38, 44, hf), D=o.projD)
    stamp(A, o, 1)
    A('s_nop 15')
    A(f's_mov_b32 s44, {86*1024}')
    for t in range(3):
        if t == 2:
            A('s_cmp_eq_u32 s35, 28')
            A(f's_cbranch_scc1 L_skip_{name}')
        for qb in range(2):
            b = acc(qb, t); pk = 32 + (t*2+qb)*4
            for r in range(8): A(f'v_mul_f32 v{b+r}, v{b+r}, v{b+8+r}')
            for r in range(0, 8, 2): A(f'v_cvt_pk_bf16_f32 v{pk+r//2}, v{b+r}, v{b+r+1}')
            A(f'buffer_store_dwordx4 {v(pk,4)}, v20, {s(SP,4)}, {"s44" if qb else "0"} offen offset:{t*1024}')
    A(f'L_skip_{name}:')
    if o.timing: A('s_waitcnt vmcnt(0)')
    stamp(A, o, 2)
    dump_stamps(A, o, 3, 's12', 's13', 's15', 4)
    A(f'L_end_{name}:')
    A('s_endpgm')
    return (name, 232, 256, 2*49152 + 256, 512, 96, 256)

def gen_down(A, name, o):
    kernel_begin(A, name)
    SW, SA0, SA1, SX, SM, SO = 16, 20, 24, 28, 48, 52
    NK = 22
    A(f'''
    s_cmp_ge_u32 s2, 256
    s_cbranch_scc1 L_end_{name}
    s_load_dwordx2 s[4:5], s[0:1], 64
    s_load_dwordx2 s[6:7], s[0:1], 88
    s_load_dwordx2 s[12:13], s[0:1], 104
    ''')
    stamp(A, o, 0)
    A(f'''
    v_lshrrev_b32 v1, 6, v0
    v_mov_b32 v24, v0
    v_and_b32 v0, 63, v0
    v_readfirstlane_b32 s15, v1
    s_and_b32 s33, s2, 7
    s_lshr_b32 s34, s2, 6
    s_lshl_b32 s33, s33, 2
    s_add_u32 s34, s34, s33
    s_bfe_u32 s35, s2, 0x30003
    v_lshlrev_b32 v20, 4, v0
    s_lshl_b32 s36, s15, 15
    ''')
    lane_parts(A, 2)
    A(f'''
    v_lshl_add_u32 v6, v5, 3, v2
    v_lshl_add_u32 v3, v4, 5, v3
    v_lshl_add_u32 v3, v6, 7, v3
    v_add_u32 v3, s36, v3
    v_lshrrev_b32 v2, 1, v2
    v_lshl_add_u32 v10, v2, 6, v3
    v_xor_b32 v2, 1, v2
    v_lshl_add_u32 v11, v2, 6, v3
    v_lshrrev_b32 v2, 3, v0
    v_and_b32 v3, 7, v0
    v_bfe_u32 v4, v0, 4, 1
    v_lshlrev_b32 v4, 2, v4
    v_xor_b32 v3, v3, v4
    v_lshlrev_b32 v2, 10, v2
    v_lshl_add_u32 v12, v3, 4, v2
    v_add_u32 v13, {8192-1024}, v12
    v_lshrrev_b32 v2, 3, v24
    v_and_b32 v3, 7, v24
    v_lshlrev_b32 v14, 10, v2
    v_lshl_add_u32 v14, v3, 4, v14
    v_lshlrev_b32 v15, 5, v3
    v_mul_u32_u24 v16, 272, v2
    v_add_u32 v16, v16, v15
    v_and_b32 v2, 31, v0
    v_mul_u32_u24 v17, 272, v2
    v_lshl_add_u32 v17, v5, 5, v17
    v_add_u32 v17, s36, v17
    s_mul_i32 s37, s15, {NK*16*1024}
    s_mul_i32 s38, s15, {NK*1024}
    s_waitcnt lgkmcnt(0)
    s_lshl_b32 s40, s35, 7
    s_add_u32 s{SW}, s4, s40
    s_addc_u32 s{SW+1}, s5, 0
    s_sub_u32 s{SW+2}, {1376*1024}, s40
    s_and_b32 s{SW+1}, s{SW+1}, 0xffff
    s_mov_b32 s{SW+3}, 0x20000
    s_mul_i32 s41, s34, {2*86*1024}
    s_add_u32 s41, s41, {A_OFF}
    s_add_u32 s{SA0}, s12, s41
    s_addc_u32 s{SA0+1}, s13, 0
    s_add_u32 s{SA1}, s{SA0}, {86*1024}
    s_addc_u32 s{SA1+1}, s{SA0+1}, 0
    s_lshl_b32 s41, s34, 16
    s_add_u32 s41, s41, s40
    s_add_u32 s{SO}, s6, s41
    s_addc_u32 s{SO+1}, s7, 0
    s_add_u32 s41, s41, {X1_OFF}
    s_add_u32 s{SX}, s12, s41
    s_addc_u32 s{SX+1}, s13, 0
    s_lshl_b32 s39, s35, 8
    s_add_u32 s39, s39, {5*2048}
    s_mov_b32 s46, 32768
    ''')
    srd(A, SA0, f's{SA0}', f's{SA0+1}', 86*1024)
    srd(A, SA1, f's{SA1}', f's{SA1+1}', 86*1024)
    srd(A, SX, f's{SX}', f's{SX+1}', 63*1024 + 128)
    srd(A, SO, f's{SO}', f's{SO+1}', 63*1024 + 128)
    srd(A, SM, 's12', 's13', 6*2048)
    acc = lambda qb, t: 64 + (qb*2+t)*16
    wf = lambda ks, t: 32 + ((ks % 4)*2+t)*4
    hf = lambda ks, qb: (ks*2+qb)*4
    vm = VM()
    def issue(ks):
        L = [(f's_add_u32 m0, s36, {(ks % 16)*2048}', None),
             (f's_add_u32 s43, s37, {ks*16*1024}', None),
             (f'buffer_load_dwordx4 v12, {s(SW,4)}, s43 offen {o.wflags} lds', ('w', ks)),
             (f'buffer_load_dwordx4 v13, {s(SW,4)}, s43 offen offset:1024 {o.wflags} lds', ('w', ks)),
             (f's_add_u32 s44, s38, {ks*1024}', None),
             (f'buffer_load_dwordx4 {a(hf(ks,0),4)}, v20, {s(SA0,4)}, s44 offen', ('a', ks)),
             (f'buffer_load_dwordx4 {a(hf(ks,1),4)}, v20, {s(SA1,4)}, s44 offen', ('a', ks))]
        return L
    def emit(lst):
        for ins, tag in lst:
            A(ins)
            if tag is not None: vm.add(tag)
    def reads(ks):
        return [f'ds_read_b64_tr_b16 {v(wf(ks,t)+2*j2,2)}, v{10+t} offset:{(ks % 16)*2048 + 4*j2*128}' for t in range(2) for j2 in range(2)]
    D = o.downD
    for ks in range(D): emit(issue(ks))
    for ks in range(2):
        A(f's_waitcnt vmcnt({vm.need(lambda x: x[0]=="w" and x[1] <= ks)})')
        A.ext(reads(ks))
    for ks in range(NK):
        n = vm.need(lambda x: (x[0] == 'w' and x[1] <= ks+2) or (x[0] == 'a' and x[1] <= ks))
        A(f's_waitcnt vmcnt({n}) lgkmcnt({4 if ks+1 < NK else 0})')
        rd = reads(ks+2) if ks+2 < NK else []
        vg = issue(ks+D) if ks+D < NK else []
        if ks + D == NK:
            vg = [(f'buffer_load_dwordx4 v[128:131], v14, {s(SX,4)}, 0 offen', ('x', 0)),
                  (f'buffer_load_dwordx4 v[132:135], v14, {s(SX,4)}, s46 offen', ('x', 0)),
                  (f'buffer_load_dwordx4 v[136:139], v15, {s(SM,4)}, s39 offen', ('x', 0)),
                  (f'buffer_load_dwordx4 v[140:143], v15, {s(SM,4)}, s39 offen offset:16', ('x', 0))]
        units = []; cur = []
        for it in vg:
            cur.append(it)
            if it[1] is not None: units.append(cur); cur = []
        g = 0
        for t in range(2):
            for qb in range(2):
                cc = '0' if ks == 0 else v(acc(qb,t),16)
                A(f'{MF} {v(acc(qb,t),16)}, {v(wf(ks,t),4)}, {a(hf(ks,qb),4)}, {cc}')
                if g < len(rd): A(rd[g])
                if g < len(units): emit(units[g])
                g += 1
    stamp(A, o, 1)
    A('s_nop 15')
    for qb in range(2):
        for t in range(2):
            for hh in range(2):
                b = acc(qb, t) + 8*hh
                off = qb*32*272 + (t*32 + hh*16)*4
                A(f'ds_write_b128 v17, {v(b,4)} offset:{off}')
                A(f'ds_write_b128 v17, {v(b+4,4)} offset:{off+16}')
    A('s_waitcnt lgkmcnt(0)')
    A('s_barrier')
    A('v_add_u32 v18, 0x10000, v16')
    for p in range(2):
        for w in range(4):
            base = 64 + (p*4+w)*8
            off = (w & 1)*32768 + p*32*272
            ar = 18 if w >= 2 else 16
            A(f'ds_read_b128 {v(base,4)}, v{ar} offset:{off}')
            A(f'ds_read_b128 {v(base+4,4)}, v{ar} offset:{off+16}')
    A('s_waitcnt vmcnt(0)')
    for p in range(2):
        A(f's_waitcnt lgkmcnt({8 if p == 0 else 0})')
        b = 64 + p*32
        unpack8(A, 128+4*p, 32)
        for j in range(8):
            A(f'v_add_f32 v{b+j}, v{b+j}, v{b+8+j}')
            A(f'v_add_f32 v{b+16+j}, v{b+16+j}, v{b+24+j}')
            A(f'v_add_f32 v{b+j}, v{b+j}, v{b+16+j}')
            A(f'v_fmac_f32 v{32+j}, v{136+j}, v{b+j}')
        for i in range(4): A(f'v_cvt_pk_bf16_f32 v{40+4*p+i}, v{32+2*i}, v{33+2*i}')
        A(f'buffer_store_dwordx4 {v(40+4*p,4)}, v14, {s(SO,4)}, {"s46" if p else "0"} offen')
    if o.timing: A('s_waitcnt vmcnt(0)')
    stamp(A, o, 2)
    dump_stamps(A, o, 3, 's12', 's13', 's15', 5)
    A(f'L_end_{name}:')
    A('s_endpgm')
    return (name, 256, 256, 131072, 144+176, 96, 144)
```

```python
from common import *

LOG2E = 1.4426950408889634
QSCALE = 128**-0.5 * LOG2E

def unpack8(A, src, dst):
    for i in range(4):
        A(f'v_lshlrev_b32 v{dst+2*i}, 16, v{src+i}')
        A(f'v_and_b32 v{dst+2*i+1}, 0xffff0000, v{src+i}')

def dpp_add(A, r, ctrl):
    A('s_nop 1')
    A(f'v_add_f32_dpp v{r}, v{r}, v{r} {ctrl} row_mask:0xf bank_mask:0xf')

def swap_add(A, kind, x, y):
    A('s_nop 1')
    A(f'v_permlane{kind}_swap_b32 v{x}, v{y}')
    A('s_nop 1')
    A(f'v_add_f32 v{x}, v{x}, v{y}')

def gen_pre(A, name, o):
    kernel_begin(A, name)
    SX, SC, SWM, SH = 16, 20, 24, 28
    A(f'''
    s_cmp_ge_u32 s2, 272
    s_cbranch_scc1 L_end_{name}
    s_load_dwordx2 s[4:5], s[0:1], 0
    s_load_dwordx4 s[8:11], s[0:1], 72
    s_load_dwordx2 s[12:13], s[0:1], 104
    ''')
    stamp(A, o, 0)
    A(f'''
    v_lshrrev_b32 v1, 6, v0
    v_mov_b32 v60, v0
    v_and_b32 v0, 63, v0
    v_readfirstlane_b32 s15, v1
    s_and_b32 s33, s2, 7
    s_lshr_b32 s34, s2, 3
    s_and_b32 s35, s15, 1
    s_lshr_b32 s36, s15, 1
    s_add_u32 s36, s36, s34
    s_and_b32 s36, s36, 7
    s_lshl_b32 s37, s33, 6
    s_lshl_b32 s38, s35, 9
    s_add_u32 s37, s37, s38
    s_sub_u32 s39, s2, 256
    s_lshl_b32 s39, s39, 7
    s_add_u32 s39, s39, 1024
    s_lshl_b32 s38, s35, 6
    s_add_u32 s38, s38, s39
    s_cmp_ge_u32 s2, 256
    s_cselect_b32 s37, s38, s37
    s_lshl_b32 s36, s36, 6
    v_lshrrev_b32 v1, 3, v0
    v_lshl_add_u32 v1, v1, 3, s36
    v_lshlrev_b32 v2, 1, v1
    v_mul_u32_u24 v3, 6144, v1
    v_and_b32 v4, 7, v0
    v_lshl_add_u32 v4, v4, 3, s37
    v_lshl_add_u32 v3, v4, 1, v3
    v_lshlrev_b32 v5, 4, v0
    s_waitcnt lgkmcnt(0)
    ''')
    srd(A, SX, 's4', 's5', 2048*1024)
    srd(A, SC, 's8', 's9', 1024)
    srd(A, SWM, 's10', 's11', 512*6144)
    A(f's_mov_b32 s{SH}, s12')
    srd(A, SH, f's{SH}', 's13', H_OFF + 2048*1024)
    A(f'buffer_load_dwordx4 v[8:11], v2, {s(SC,4)}, 0 offen')
    for i in range(8):
        A(f's_mov_b32 s40, {i*6144}')
        A(f'buffer_load_dwordx4 {v(64+4*i,4)}, v3, {s(SWM,4)}, s40 offen nt')
    A(f'''
    s_lshl_b32 s40, s34, 4
    s_add_u32 s40, s40, s15
    s_lshl_b32 s40, s40, 12
    ''')
    for i in range(4):
        A(f'buffer_load_dwordx4 {v(96+4*i,4)}, v5, {s(SX,4)}, s40 offen offset:{i*1024}')
    A(f'''
    s_bfe_u32 s41, s15, 0x10002
    s_lshl_b32 s42, s34, 1
    s_add_u32 s41, s41, s42
    s_and_b32 s42, s15, 3
    s_lshl_b32 s43, s33, 2
    s_add_u32 s43, s43, s42
    s_lshl_b32 s44, s41, 15
    s_lshl_b32 s45, s43, 5
    s_add_u32 s44, s44, s45
    v_and_b32 v6, 31, v0
    v_lshrrev_b32 v7, 5, v0
    v_lshlrev_b32 v12, 10, v6
    v_lshl_add_u32 v12, v7, 4, v12
    buffer_load_dwordx4 v[112:115], v12, {s(SX,4)}, s44 offen
    s_waitcnt vmcnt(13)
    ''')
    unpack8(A, 8, 16)
    for i in range(8):
        A(f'v_mul_f32 v{24+i}, {f2u(-LOG2E)}, v{16+i}')
    for i in range(8): A(f'v_exp_f32 v{24+i}, v{24+i}')
    for i in range(8): A(f'v_add_f32 v{24+i}, 1.0, v{24+i}')
    for i in range(8): A(f'v_rcp_f32 v{24+i}, v{24+i}')
    for i in range(8): A(f'v_mul_f32 v{16+i}, v{16+i}, v{24+i}')
    for i in range(4): A(f'v_cvt_pk_bf16_f32 v{8+i}, v{16+2*i}, v{17+2*i}')
    unpack8(A, 8, 16)
    for i in range(8):
        A(f's_waitcnt vmcnt({12-i})')
        unpack8(A, 64+4*i, 24)
        for j in range(8):
            if i == 0: A(f'v_mul_f32 v{32+j}, v{16}, v{24+j}')
            else: A(f'v_fmac_f32 v{32+j}, v{16+i}, v{24+j}')
    for j in range(0, 8, 2): swap_add(A, 16, 32+j, 33+j)
    swap_add(A, 32, 32, 34); swap_add(A, 32, 36, 38)
    dpp_add(A, 32, 'row_ror:8'); dpp_add(A, 36, 'row_ror:8')
    A(f'''
    v_and_b32 v4, 7, v0
    v_lshrrev_b32 v13, 4, v0
    v_lshl_add_u32 v4, v4, 3, v13
    s_lshl_b32 s40, s15, 8
    v_lshl_add_u32 v4, v4, 2, s40
    ds_write_b32 v4, v32
    ds_write_b32 v4, v36 offset:16
    s_waitcnt vmcnt(1)
    ''')
    for i in range(4):
        unpack8(A, 96+4*i, 64+8*i)
        b = 64+8*i
        A(f'v_add_f32 v{40+i}, v{b}, v{b+1}')
        for j in range(2, 8): A(f'v_add_f32 v{40+i}, v{40+i}, v{b+j}')
    def red4():
        swap_add(A, 16, 40, 41); swap_add(A, 16, 42, 43); swap_add(A, 32, 40, 42)
        for c in ('row_ror:8', 'row_ror:4', 'row_ror:2', 'row_ror:1'): dpp_add(A, 40, c)
    red4()
    A(f'v_mul_f32 v44, {f2u(1/512)}, v40')
    A('s_nop 0')
    for i in range(4): A(f'v_readlane_b32 s{48+i}, v44, {16*i}')
    A('s_nop 1')
    for i in range(4):
        b = 64+8*i
        for j in range(8): A(f'v_subrev_f32 v{b+j}, s{48+i}, v{b+j}')
        A(f'v_mul_f32 v{40+i}, v{b}, v{b}')
        for j in range(1, 8): A(f'v_fmac_f32 v{40+i}, v{b+j}, v{b+j}')
    red4()
    A(f'''
    v_mov_b32 v46, {f2u(1e-5)}
    v_fmac_f32 v46, {f2u(1/512)}, v40
    v_rsq_f32 v45, v46
    s_lshl_b32 s40, s15, 5
    v_lshl_add_u32 v4, v13, 3, s40
    ds_write_b64 v4, v[44:45] offset:4096
    s_waitcnt lgkmcnt(0)
    s_barrier
    s_cmp_ge_u32 s15, 2
    s_cbranch_scc1 L_skip_{name}
    v_lshlrev_b32 v4, 2, v60
    ''')
    for kb in range(8): A(f'ds_read_b32 v{24+kb}, v4 offset:{kb*512}')
    A('s_waitcnt lgkmcnt(0)')
    for kb in range(1, 8): A(f'v_add_f32 v24, v24, v{24+kb}')
    A(f'''
    v_cvt_pk_bf16_f32 v24, v24, v24
    v_and_b32 v24, 0xffff0000, v24
    s_cmp_ge_u32 s2, 256
    s_cbranch_scc0 L_main_{name}
    s_lshl_b32 s40, s39, 2
    buffer_store_dword v24, v4, {s(SH,4)}, s40 offen
    L_main_{name}:
    ds_write_b32 v4, v24 offset:5120
    s_waitcnt lgkmcnt(0)
    L_skip_{name}:
    s_barrier
    s_cmp_ge_u32 s2, 256
    s_cbranch_scc1 L_fin_{name}
    s_cmp_ge_u32 s15, 8
    s_cbranch_scc1 L_fin_{name}
    s_bfe_u32 s46, s15, 0x10002
    s_lshl_b32 s46, s46, 8
    v_lshl_add_u32 v4, v6, 3, s46
    ds_read_b64 v[44:45], v4 offset:4096
    s_lshl_b32 s46, s42, 6
    v_lshl_add_u32 v4, v7, 5, s46
    ds_read_b128 v[24:27], v4 offset:5120
    ds_read_b128 v[28:31], v4 offset:5136
    ds_read_b128 v[32:35], v4 offset:5376
    ds_read_b128 v[36:39], v4 offset:5392
    s_waitcnt vmcnt(0)
    ''')
    unpack8(A, 112, 16)
    A('s_waitcnt lgkmcnt(0)')
    A(f's_mov_b32 s46, {f2u(QSCALE)}')
    for j in range(8):
        A(f'v_sub_f32 v{16+j}, v{16+j}, v44')
        A(f'v_add_f32 v{32+j}, 1.0, v{32+j}')
        A(f'v_mul_f32 v{16+j}, v{16+j}, v45')
        A(f'v_fma_f32 v{16+j}, v{16+j}, v{32+j}, v{24+j}')
        A(f'v_mul_f32 v{16+j}, s46, v{16+j}')
    for i in range(4): A(f'v_cvt_pk_bf16_f32 v{8+i}, v{16+2*i}, v{17+2*i}')
    A(f'''
    s_lshl_b32 s44, s41, 15
    s_lshl_b32 s45, s43, 10
    s_add_u32 s44, s44, s45
    s_add_u32 s44, s44, {H_OFF}
    buffer_store_dwordx4 v[8:11], v5, {s(SH,4)}, s44 offen
    L_fin_{name}:
    ''')
    stamp(A, o, 1)
    dump_stamps(A, o, 2, 's12', 's13', 's15', 0, 16)
    A(f'L_end_{name}:')
    A('s_endpgm')
    return (name, 272, 1024, 8192, 120, 96, 120)

def gen_red(A, name, o):
    kernel_begin(A, name)
    SX, SP, SM, SW = 16, 20, 24, 28
    A(f'''
    s_cmp_ge_u32 s2, 256
    s_cbranch_scc1 L_end_{name}
    s_load_dwordx2 s[4:5], s[0:1], 0
    s_load_dwordx2 s[12:13], s[0:1], 104
    ''')
    stamp(A, o, 0)
    A(f'''
    v_lshrrev_b32 v1, 6, v0
    v_and_b32 v2, 7, v0
    v_lshrrev_b32 v3, 3, v0
    v_readfirstlane_b32 s15, v1
    s_and_b32 s33, s2, 7
    s_lshr_b32 s34, s2, 3
    s_lshl_b32 s35, s33, 5
    s_add_u32 s35, s35, s34
    s_lshr_b32 s36, s35, 2
    s_and_b32 s37, s35, 3
    s_lshl_b32 s36, s36, 15
    s_lshl_b32 s37, s37, 7
    s_add_u32 s36, s36, s37
    s_lshl_b32 s35, s35, 13
    v_lshlrev_b32 v4, 9, v3
    v_lshl_add_u32 v4, v2, 4, v4
    v_lshlrev_b32 v5, 10, v2
    v_lshl_add_u32 v5, v3, 4, v5
    v_lshlrev_b32 v6, 5, v3
    s_waitcnt lgkmcnt(0)
    s_add_u32 s{SP}, s12, {PART_OFF}
    s_addc_u32 s{SP+1}, s13, 0
    s_add_u32 s{SW}, s12, {X1_OFF}
    s_addc_u32 s{SW+1}, s13, 0
    ''')
    srd(A, SP, f's{SP}', f's{SP+1}', 16 << 20)
    srd(A, SX, 's4', 's5', 2048*1024)
    srd(A, SM, 's12', 's13', 6*2048)
    srd(A, SW, f's{SW}', f's{SW+1}', 4 << 20)
    for sp in range(8):
        A(f's_add_u32 s40, s36, {sp << 21}')
        A(f'buffer_load_dwordx4 {v(32+4*sp,4)}, v4, {s(SP,4)}, s40 offen')
    A(f'buffer_load_dwordx4 v[64:67], v5, {s(SX,4)}, s35 offen')
    for m, base in ((2, 68), (4, 76), (3, 84)):
        A(f's_mov_b32 s40, {m*2048}')
        A(f'buffer_load_dwordx4 {v(base,4)}, v6, {s(SM,4)}, s40 offen')
        A(f'buffer_load_dwordx4 {v(base+4,4)}, v6, {s(SM,4)}, s40 offen offset:16')
    for sp in range(8):
        A(f's_waitcnt vmcnt({14-sp})')
        if sp == 0: unpack8(A, 32, 8)
        else:
            unpack8(A, 32+4*sp, 16)
            for j in range(8): A(f'v_add_f32 v{8+j}, v{8+j}, v{16+j}')
    A('s_waitcnt vmcnt(4)')
    unpack8(A, 64, 16)
    for j in range(8): A(f'v_fmac_f32 v{16+j}, v{68+j}, v{8+j}')
    for i in range(4): A(f'v_cvt_pk_bf16_f32 v{24+i}, v{16+2*i}, v{17+2*i}')
    A(f'buffer_store_dwordx4 v[24:27], v5, {s(SW,4)}, s35 offen')
    unpack8(A, 24, 16)
    A(f'''
    s_lshl_b32 s40, s15, 2
    v_lshl_add_u32 v7, v2, 5, s40
    v_lshlrev_b32 v1, 5, v2
    ''')
    def rowred(r, off):
        dpp_add(A, r, 'row_ror:8')
        A(f'v_mov_b32 v{r+1}, v{r}')
        swap_add(A, 16, r, r+1)
        A(f'v_mov_b32 v{r+1}, v{r}')
        swap_add(A, 32, r, r+1)
        A(f'ds_write_b32 v7, v{r} offset:{off}')
        A('s_waitcnt lgkmcnt(0)')
        A('s_barrier')
        A(f'ds_read_b128 v[32:35], v1 offset:{off}')
        A(f'ds_read_b128 v[36:39], v1 offset:{off+16}')
        A('s_waitcnt lgkmcnt(0)')
        A(f'v_add_f32 v{r}, v32, v33')
        for j in range(2, 8): A(f'v_add_f32 v{r}, v{r}, v{32+j}')
    A('v_add_f32 v8, v16, v17')
    for j in range(2, 8): A(f'v_add_f32 v8, v8, v{16+j}')
    rowred(8, 0)
    A(f'v_mul_f32 v8, {f2u(1/512)}, v8')
    for j in range(8): A(f'v_sub_f32 v{16+j}, v{16+j}, v8')
    A('v_mul_f32 v10, v16, v16')
    for j in range(1, 8): A(f'v_fmac_f32 v10, v{16+j}, v{16+j}')
    rowred(10, 256)
    A(f'''
    v_mov_b32 v12, {f2u(1e-5)}
    v_fmac_f32 v12, {f2u(1/512)}, v10
    v_rsq_f32 v12, v12
    s_waitcnt vmcnt(1)
    ''')
    for j in range(8):
        A(f'v_add_f32 v{76+j}, 1.0, v{76+j}')
        A(f'v_mul_f32 v{16+j}, v{16+j}, v12')
        A(f'v_fma_f32 v{16+j}, v{16+j}, v{76+j}, v{84+j}')
    for i in range(4): A(f'v_cvt_pk_bf16_f32 v{28+i}, v{16+2*i}, v{17+2*i}')
    A(f's_add_u32 s40, s36, {H2_OFF - X1_OFF}')
    A(f'buffer_store_dwordx4 v[28:31], v4, {s(SW,4)}, s40 offen')
    stamp(A, o, 1)
    dump_stamps(A, o, 2, 's12', 's13', 's15', 3, 8)
    A(f'L_end_{name}:')
    A('s_endpgm')
    return (name, 256, 512, 1024, 96, 96, 96)
```

```python
import sys
from common import *
import small, gemms, attn2
class Opt:
    timing = False
    drop = None
    dma_gaps = (22, 23, 18, 20)
    vgaps = [0,0,1,2,2,3,4,4,5,6,6,7,8,9,10,11]
    kgaps = [16,17,18,19,21,22,23,24]
    ldscost = 4; dmacost = 8
    projD = 2; downD = 6
    wflags = 'nt'; kvflags = 'nt'
    only = None
def build(o):
    A = Asm()
    A('.amdgcn_target "amdgcn-amd-amdhsa--gfx950"')
    A('.text')
    gens = [('pre_kernel', small.gen_pre), ('attn_kernel', attn2.gen_attn), ('oproj_kernel', gemms.gen_oproj),
            ('red_kernel', small.gen_red), ('glu_kernel', gemms.gen_glu), ('down_kernel', gemms.gen_down)]
    ks = [g(A, n, o) for n, g in gens if o.only is None or n.split('_')[0] in o.only]
    txt = HEADER
    for (n, grid, blk, lds, nv, ns, acc) in ks:
        txt += f'; @launch kernel={n} grid=({grid},1,1) block=({blk},1,1) lds={lds}\n'
    txt += A.text() + '.section .rodata,"a"\n'
    for (n, grid, blk, lds, nv, ns, acc) in ks:
        txt += '.p2align 6\n' + kernel_desc(n, nv, ns, acc)
    return txt
if __name__ == '__main__':
    o = Opt()
    for kv in sys.argv[2:]:
        k, val = kv.split('=', 1)
        setattr(o, k, eval(val))
    open(sys.argv[1], 'w').write(build(o))
```

```python
from c16 import *

VKADDR = 4
VVADDR = 8
VKDMA = 16
VVDMA = 18
VL16 = 20
VONE = 24
VT = 28
VCHK = 36
VTMP = 38
VQ = 48
VS = 112
VP = 176
VNM = 208
VL = 224
VWADDR = 240
VWDMA = 248
def Q(qb, ds): return VQ + (qb*4+ds)*4
def S(par, qb, kt=0): return VS + ((par*4+qb)*2+kt)*4
def P(par, qb): return VP + (par*4+qb)*4
def NM(qb): return VNM + qb*4
def L(par, qb): return VL + (par*4+qb)*4
def QACC(qb, nt): return VS + (qb*8+nt)*4
def O(qb, dt): return (qb*8+dt)*4
def KF(kt, ds): return 128 + (kt*4+ds)*4
def VF(dt): return 160 + dt*4

SK, SV, SW, SH, SO = 16, 20, 24, 28, 32
SOFF, SM0, SCNT, STHR = 36, 37, 38, 39
OFFS = 16.0
THR = 2.0**24

def kread(kt, ds, slot):
    return f'ds_read_b128 {a(KF(kt,ds),4)}, v{VKADDR+ds} offset:{slot*16384 + kt*8192}'
def vread(dt, j2, slot):
    return f'ds_read_b64_tr_b16 {a(VF(dt)+2*j2,2)}, v{VVADDR+dt} offset:{slot*16384 + j2*8192 + 2048}'
def dma(n, o):
    if n < 2:
        return f'buffer_load_dwordx4 v{VKDMA+n}, {s(SK,4)}, s{SOFF} offen offset:{n*1024} {o.kvflags} lds'
    return f'buffer_load_dwordx4 v{VVDMA+n-2}, {s(SV,4)}, s{SOFF} offen offset:{n*1024} {o.kvflags} lds'
def qk_list(par, o, zero=False):
    if o.qkorder == 'chain':
        idx = [(qb, kt, ds) for kt in range(2) for qb in range(4) for ds in range(4)]
    else:
        idx = [(qb, kt, ds) for kt in range(2) for ds in range(4) for qb in range(4)]
    return [f'{MF} {v(S(par,qb,kt),4)}, {a(KF(kt,ds),4)}, {v(Q(qb,ds),4)}, {("0" if zero else v(NM(qb),4)) if ds == 0 else v(S(par,qb,kt),4)}' for qb, kt, ds in idx]
def pv_list(par, o, zero=False):
    idx = [(qb, dt) for dt in range(8) for qb in range(4)] if o.pvorder == 'dt' else [(qb, dt) for qb in range(4) for dt in range(8)]
    return [f'{MF} {a(O(qb,dt),4)}, {a(VF(dt),4)}, {v(P(par,qb),4)}, {"0" if zero else a(O(qb,dt),4)}' for qb, dt in idx]
def l_mfma(par, qb, first=False):
    return f'{MF} {v(L(par,qb),4)}, {v(VONE,4)}, {v(P(par,qb),4)}, {"0" if first else v(L(par^1,qb),4)}'
def exp_op(par, n):
    qb, r = n >> 3, n & 7
    return f'v_exp_f32 v{VT + (n % 8)}, v{S(par,qb)+r}'
def cvt_op(par, p):
    qb, pr = p >> 2, p & 3
    return f'v_cvt_pk_bf16_f32 v{P(par,qb)+pr}, v{VT + (2*p % 8)}, v{VT + ((2*p+1) % 8)}'

def emit_step(A, t, o, tag, zero_o=False, no_pv=False, no_qk=False, sm=True, check=True, first=False,
              vread_on=True, kread_on=True, dma_on=True, vmn=8, bar=True, tail=[]):
    par = t & 1
    slot_cur = (t + 1) % 4; slot_nxt = (t + 2) % 4
    mf = (qk_list(par ^ 1, o) if not no_qk else [None]*32) + (pv_list(par ^ 1, o, zero_o) if not no_pv else [None]*32)
    pat = o.pat
    assert len(pat) == 64
    vq = [vread(dt, j2, slot_cur) for dt in range(8) for j2 in range(2)] if vread_on else []
    kq = [kread(kt, ds, slot_nxt) for kt in range(2) for ds in range(4)] if kread_on else []
    ne = 0; nc = 0; nd = 0; nl = 0
    hist = []
    def since(kind, idx):
        for d, h in enumerate(reversed(hist)):
            if h == (kind, idx): return d
        return None
    def put(ins, key=('x', 0)):
        A(ins); hist.append(key)
    for g in range(64):
        if mf[g] is not None: put(mf[g])
        for ch in pat[g]:
            if ch == 'e':
                if sm: put(exp_op(par, ne), ('e', ne))
                ne += 1
            elif ch == 'c':
                assert 2*nc + 1 < ne, (g, nc, ne)
                if sm:
                    if since('e', 2*nc+1) == 0: put('s_nop 0')
                    put(cvt_op(par, nc), ('c', nc))
                nc += 1
            elif ch == 'v':
                if vq: put(vq.pop(0))
            elif ch == 'k':
                if kq: put(kq.pop(0))
            elif ch == 'L':
                assert nc >= 4*nl + 4, (g, nc, nl)
                if sm:
                    d = since('c', 4*nl+3)
                    if d < 2: put(f's_nop {1-d}')
                    put(l_mfma(par, nl, first), ('L', nl))
                nl += 1
            elif ch == 'B':
                put(f's_waitcnt vmcnt({vmn}) lgkmcnt(0)' if bar else 's_waitcnt lgkmcnt(0)')
                if bar: put('s_barrier')
            elif ch == 'W':
                if kread_on: put('s_waitcnt lgkmcnt(0)')
            elif ch == 'm':
                if dma_on: put(f's_add_u32 m0, s{SM0}, {slot_cur*16384}')
            elif ch == 'D':
                if dma_on: put(dma(nd, o))
                nd += 1
            elif ch == 'o':
                if dma_on: put(f's_add_u32 s{SOFF}, s{SOFF}, 8192')
            elif ch == 'x':
                if sm and check:
                    d = since('L', 2)
                    if d < 8: put(f's_nop {7-d}')
                    put(f'v_max3_f32 v{VCHK}, v{L(par,0)}, v{L(par,1)}, v{L(par,2)}')
            elif ch == 'y':
                if sm and check:
                    d = since('L', 3)
                    if d < 8: put(f's_nop {7-d}')
                    put(f'v_max_f32 v{VCHK}, v{VCHK}, v{L(par,3)}')
            elif ch == 'z':
                if sm and check: put(f'v_cmp_lt_f32 vcc, s{STHR}, v{VCHK}')
            elif ch == 't':
                for x in tail: put(x)
            elif ch == '.': pass
            else: raise ValueError(ch)
    assert ne == 32 and nc == 16 and nl == 4 and nd == 4 and not vq and not kq, (ne, nc, nl, nd, vq, kq)
    if sm and check:
        A(f's_cbranch_vccnz L_rare_{tag}')
        A(f'L_back_{tag}:')

def emit_rowmax(A, par, qb, dst, tmp):
    b = S(par, qb)
    A(f'v_max3_f32 v{dst}, v{b}, v{b+1}, v{b+2}')
    A(f'v_max3_f32 v{dst}, v{dst}, v{b+3}, v{b+4}')
    A(f'v_max3_f32 v{dst}, v{dst}, v{b+5}, v{b+6}')
    A(f'v_max_f32 v{dst}, v{dst}, v{b+7}')
    for k in (16, 32):
        A(f'v_mov_b32 v{tmp}, v{dst}')
        swap_op(A, k, dst, tmp, 'max')

def emit_rare_sub(A, par, name):
    A(f'L_raresub{par}_{name}:')
    A('s_nop 15')
    for qb in range(4):
        d, tm, f = VTMP, VTMP + 1, VTMP + 2
        emit_rowmax(A, par, qb, d, tm)
        A(f'v_ceil_f32 v{d}, v{d}')
        A(f'v_add_f32 v{d}, {f2u(OFFS)}, v{d}')
        A(f'v_max_f32 v{d}, 0, v{d}')
        A(f'v_exp_f32 v{f}, -v{d}')
        for r in range(4): A(f'v_sub_f32 v{NM(qb)+r}, v{NM(qb)+r}, v{d}')
        for r in range(8):
            A(f'v_sub_f32 v{S(par,qb)+r}, v{S(par,qb)+r}, v{d}')
            A(f'v_sub_f32 v{S(par^1,qb)+r}, v{S(par^1,qb)+r}, v{d}')
        for r in range(4): A(f'v_mul_f32 v{L(par^1,qb)+r}, v{L(par^1,qb)+r}, v{f}')
        for r in range(32):
            A(f'v_accvgpr_read_b32 v{tm}, a{O(qb,0)+r}')
            A(f'v_mul_f32 v{tm}, v{tm}, v{f}')
            A(f'v_accvgpr_write_b32 a{O(qb,0)+r}, v{tm}')
        for r in range(8): A(exp_op(par, qb*8+r))
        A('s_nop 0')
        for p in range(4): A(cvt_op(par, qb*4+p))
        A('s_nop 1')
        A(l_mfma(par, qb))
    A('s_nop 7')
    A('s_setpc_b64 s[46:47]')

def gen_attn(A, name, o):
    kernel_begin(A, name)
    A('s_cmp_ge_u32 s2, 256')
    A(f's_cbranch_scc1 L_end_{name}')
    A('s_load_dwordx4 s[4:7], s[0:1], 8')
    A('s_load_dwordx2 s[8:9], s[0:1], 24')
    A('s_load_dwordx2 s[10:11], s[0:1], 104')
    stamp(A, o, 0)
    A(f'''
    s_and_b32 s12, s2, 7
    s_bfe_u32 s14, s2, 0x20003
    s_lshr_b32 s13, s2, 5
    s_lshl_b32 s12, s12, 2
    s_add_u32 s12, s12, s14
    v_lshrrev_b32 v1, 6, v0
    v_and_b32 v0, 63, v0
    v_readfirstlane_b32 s15, v1
    v_lshlrev_b32 v{VL16}, 4, v0
    ''')
    img_dma_chunks(A, 1, VVDMA)
    A(f'''
    s_lshl_b32 s40, s15, 3
    v_add_u32 v1, s40, v1
    v_lshlrev_b32 v2, 13, v1
    v_lshl_add_u32 v{VWDMA}, v{VVDMA}, 4, v2
    v_lshl_add_u32 v{VWDMA+1}, v{VVDMA+1}, 4, v2
    v_add_u32 v{VWDMA+1}, {4*8192-1024}, v{VWDMA+1}
    s_lshl_b32 s48, s15, 11
    s_mul_i32 s49, s13, {o.rotq}
    s_lshl_b32 s50, s14, 2
    s_add_u32 s49, s49, s50
    s_and_b32 s50, s2, {o.rotx}
    s_add_u32 s49, s49, s50
    s_and_b32 s49, s49, 15
    s_mov_b32 s50, s49
    s_lshl_b32 s41, s13, 2
    s_add_u32 s41, s41, s15
    s_waitcnt lgkmcnt(0)
    s_lshl_b32 s40, s12, 8
    s_add_u32 s{SW}, s8, s40
    s_addc_u32 s{SW+1}, s9, 0
    s_lshl_b32 s40, s41, 16
    s_add_u32 s40, s40, {H_OFF}
    s_add_u32 s{SH}, s10, s40
    s_addc_u32 s{SH+1}, s11, 0
    ''')
    srd(A, SW, f's{SW}', f's{SW+1}', 511*8192 + 256)
    srd(A, SH, f's{SH}', f's{SH+1}', 65536)
    vm = VM()
    def late_setup():
        img_read_addr(A, VTMP, VWADDR, 32768)
        A(f'''
        s_lshl_b32 s40, s12, 19
        s_add_u32 s{SK}, s4, s40
        s_addc_u32 s{SK+1}, s5, 0
        s_add_u32 s{SV}, s6, s40
        s_addc_u32 s{SV+1}, s7, 0
        s_sub_u32 s{SV}, s{SV}, {2048+16384}
        s_subb_u32 s{SV+1}, s{SV+1}, 0
        s_lshl_b32 s40, s41, 19
        s_lshl_b32 s42, s12, 14
        s_add_u32 s40, s40, s42
        s_add_u32 s40, s40, {O_OFF}
        s_add_u32 s{SO}, s10, s40
        s_addc_u32 s{SO+1}, s11, 0
        ''')
        srd(A, SK, f's{SK}', f's{SK+1}', 524288)
        srd(A, SV, f's{SV}', f's{SV+1}', 524288 + 2048 + 16384)
        srd(A, SO, f's{SO}', f's{SO+1}', 16384)
        A(f's_lshl_b32 s{SM0}, s15, 12')
        A(f's_mov_b32 s{STHR}, {f2u(THR)}')
        A(f'''
        v_lshlrev_b32 v2, 8, v1
        v_lshl_add_u32 v{VVDMA}, v{VVDMA}, 4, v2
        v_lshl_add_u32 v{VVDMA+1}, v{VVDMA+1}, 4, v2
        v_xor_b32 v3, v1, v0
        v_and_b32 v3, 15, v3
        v_lshl_add_u32 v{VKDMA}, v3, 4, v2
        v_xor_b32 v3, 4, v3
        v_lshl_add_u32 v{VKDMA+1}, v3, 4, v2
        v_bfe_u32 v2, v0, 3, 1
        v_lshlrev_b32 v2, 12, v2
        v_and_b32 v3, 7, v0
        v_lshl_add_u32 v2, v3, 8, v2
        v_lshrrev_b32 v3, 4, v0
        v_xor_b32 v3, v3, v0
        v_and_b32 v3, 15, v3
        ''')
        for ds in range(4):
            A(f'v_xor_b32 v{VKADDR+ds}, {4*ds}, v3')
            A(f'v_lshl_add_u32 v{VKADDR+ds}, v{VKADDR+ds}, 4, v2')
        img_read_addr(A, VTMP, VVADDR, 0, rowform='win')
        for r in range(4): A(f'v_mov_b32 v{VONE+r}, 0x3f803f80')
        A(f'''
        s_lshl_b32 s40, s15, 8
        s_add_u32 s40, s40, s2
        s_cmp_ge_u32 s40, 32
        s_cbranch_scc1 L_nomod_{name}
        s_mov_b32 s52, s10
        ''')
        srd(A, 52, 's52', 's11', MODP_OFF + 65536)
        A(f'v_lshlrev_b32 v2, 2, v0')
        A(f's_lshl_b32 s40, s2, 8')
        for k in range(8):
            A(f's_add_u32 s42, s40, {MODP_OFF + k*8192}')
            A(f'buffer_load_dword v{VT+k}, v2, s[52:55], s42 offen')
        A('s_waitcnt vmcnt(0)')
        for k in range(1, 8): A(f'v_add_f32 v{VT}, v{VT}, v{VT+k}')
        A(f'''
        v_cvt_pk_bf16_f32 v{VT}, v{VT}, v{VT}
        v_and_b32 v{VT}, 0xffff0000, v{VT}
        s_add_u32 s42, s40, 4096
        buffer_store_dword v{VT}, v2, s[52:55], s42 offen
        s_waitcnt vmcnt(0)
        L_nomod_{name}:
        ''')
    hf = lambda c, qb: (c*4+qb)*4
    wf = lambda b, nt: VQ + (b*8+nt)*4
    def kvwin(win, with_v):
        Lx = [(f's_add_u32 m0, s{SM0}, {((win+1)%4)*16384}', None), (f's_mov_b32 s{SOFF}, {(win+1)*8192}', None)]
        return Lx + [(dma(n, o), ('kv', win)) for n in range(4 if with_v else 2)]
    def extra(c):
        if c == 9: return kvwin(-1, False)
        if c == 11: return kvwin(0, False)
        if c == 14: return kvwin(1, True)
        if c == 15: return kvwin(2, True)
        return []
    nn0 = len(A.lines)
    core16(A, vm, 4, QACC, wf, hf, VWADDR, mk_w(VWDMA, 32768, 32*8192, SW, 48, 49, 43, o.wflags), mk_act(4, SH, [VL16]*4, [0,1024,2048,3072], 50, 44, hf),
           D=o.projD, extra=extra, pre_hook=late_setup, order=o.order, o=o)
    if getattr(o, 'pdrop', None):
        import re
        A.lines[nn0:] = [l for l in A.lines[nn0:] if not re.search(o.pdrop, l)]
    stamp(A, o, 1)
    n = vm.need(lambda x: x[0] == 'kv' and x[1] <= 0)
    A(f's_waitcnt vmcnt({n})')
    A('s_barrier')
    for kt in range(2):
        for ds in range(4): A(kread(kt, ds, 0))
    for ds in range(4):
        for qb in range(4):
            b = QACC(qb, 2*ds)
            for r in range(4): A(f'v_cvt_pk_bf16_f32 v{Q(qb,ds)+r}, v{b+2*r}, v{b+2*r+1}')
    for k in (32, 16):
        for ds in range(4):
            for qb in range(4):
                for r in range(2): A(f'v_permlane{k}_swap_b32 v{Q(qb,ds)+r}, v{Q(qb,ds)+2+r}')
    A('s_waitcnt lgkmcnt(0)')
    A('s_barrier')
    mf = qk_list(0, o, zero=True)
    for g in range(32):
        A(mf[g])
        if g == 0:
            A(f's_add_u32 m0, s{SM0}, 0')
            A(f's_mov_b32 s{SOFF}, {4*8192}')
        if g in (2, 4, 6, 8): A(dma(g//2 - 1, o))
        if 16 <= g < 20: A(kread(0, g-16, 1))
    for ds in range(4): A(kread(1, ds, 1))
    A(f's_add_u32 s{SOFF}, s{SOFF}, 8192')
    A('s_nop 3')
    for qb in range(4):
        d, tm = VTMP, VTMP + 1
        emit_rowmax(A, 0, qb, d, tm)
        A(f'v_ceil_f32 v{d}, v{d}')
        A(f'v_add_f32 v{d}, {f2u(OFFS)}, v{d}')
        for r in range(4): A(f'v_sub_f32 v{NM(qb)+r}, 0, v{d}')
        for r in range(8): A(f'v_sub_f32 v{S(0,qb)+r}, v{S(0,qb)+r}, v{d}')
    A('s_waitcnt lgkmcnt(0)')
    A('s_nop 0')
    stamp(A, o, 2)
    rare = []
    emit_step(A, 0, o, 'p0', no_pv=True, check=False, first=True, vread_on=False)
    emit_step(A, 1, o, 'p1', zero_o=True); rare.append((1, 'p1'))
    A(f's_mov_b32 s{SCNT}, 15')
    A(f's_branch L_mid_{name}')
    A('.p2align 6')
    A(f'L_loop_{name}:')
    n0 = len(A.lines)
    for t in range(4):
        if t == 2: A(f'L_mid_{name}:')
        tail = [f's_sub_u32 s{SCNT}, s{SCNT}, 1'] if t == 3 else []
        emit_step(A, t, o, f'l{t}', tail=tail)
        rare.append((t, f'l{t}'))
    if o.drop:
        import re
        A.lines[n0:] = [l for l in A.lines[n0:] if not re.search(o.drop, l)]
    A(f's_cmp_lg_u32 s{SCNT}, 0')
    A(f's_cbranch_scc1 L_loop_{name}')
    emit_step(A, 0, o, 'e0'); rare.append((0, 'e0'))
    emit_step(A, 1, o, 'e1', dma_on=False); rare.append((1, 'e1'))
    emit_step(A, 2, o, 'e2', dma_on=False, vmn=4, kread_on=False); rare.append((2, 'e2'))
    emit_step(A, 3, o, 'e3', no_qk=True, dma_on=False, vmn=0, kread_on=False); rare.append((3, 'e3'))
    emit_step(A, 0, o, 'e4', no_qk=True, sm=False, dma_on=False, kread_on=False, bar=False)
    stamp(A, o, 3)
    for qb in range(4): A(f'v_rcp_f32 v{L(1,qb)}, v{L(1,qb)}')
    A('s_nop 3')
    n = 0
    for m in range(4):
        for qb in range(4):
            b = VS + (n % 8) * 8
            pk = VP + (n % 8) * 4; n += 1
            if qb == 0: A(f's_mov_b32 s44, {m*4096}')
            for r in range(8): A(f'v_accvgpr_read_b32 v{b+r}, a{O(qb,2*m)+r}')
            for r in range(8): A(f'v_mul_f32 v{b+r}, v{b+r}, v{L(1,qb)}')
            for r in range(0, 8, 2): A(f'v_cvt_pk_bf16_f32 v{pk+r//2}, v{b+r}, v{b+r+1}')
            A(f'buffer_store_dwordx4 {v(pk,4)}, v{VL16}, {s(SO,4)}, s44 offen offset:{qb*1024} {o.stflags}')
    if o.timing: A('s_waitcnt vmcnt(0)')
    stamp(A, o, 4)
    dump_stamps(A, o, 5, 's10', 's11', 's15', 1)
    A(f'L_end_{name}:')
    A('s_endpgm')
    A('L_hot_end_attn:')
    for (t, tag) in rare:
        A(f'L_rare_{tag}:')
        A(f's_call_b64 s[46:47], L_raresub{t&1}_{name}')
        A(f's_branch L_back_{tag}')
    emit_rare_sub(A, 0, name)
    emit_rare_sub(A, 1, name)
    return (name, 256, 256, 163840, 512, 96, 256)
```

```python
from asmlib import *
import struct
MOD_OFF = 0
MODP_OFF = 0x4000
H_OFF = 0x100000
O_OFF = 0x400000
PART_OFF = 0x1400000
X1_OFF = 0x2400000
H2_OFF = 0x2600000
A_OFF = 0x2800000
DBG_OFF = 0x8000000
MF = 'v_mfma_f32_16x16x32_bf16'
LOG2E = 1.4426950408889634
QSCALE = 128**-0.5 * LOG2E
def f2u(x): return '0x%08x' % struct.unpack('<I', struct.pack('<f', x))[0]

class VM:
    def __init__(self): self.q = []
    def add(self, tag): self.q.append(tag)
    def need(self, pred):
        idx = [i for i, x in enumerate(self.q) if pred(x)]
        if not idx: return None
        n = len(self.q) - 1 - max(idx)
        assert n <= 63, n
        return n

def stamp(A, o, i, fine=False):
    if o.timing and (i == 0 or fine == bool(getattr(o, 'fine', False))):
        A(f's_memtime s[{64+4*i}:{65+4*i}]')
        A(f's_memrealtime s[{66+4*i}:{67+4*i}]')

def dump_stamps(A, o, n, ws_lo, ws_hi, wave_sgpr, kidx, wpw=4):
    if not o.timing: return
    if getattr(o, 'fine', False): n = 8
    A(f'''
    s_waitcnt vmcnt(0) lgkmcnt(0)
    s_mul_i32 s60, s2, {wpw}
    s_add_u32 s60, s60, {wave_sgpr}
    s_lshl_b32 s60, s60, 7
    s_add_u32 s60, s60, {DBG_OFF + kidx*0x100000}
    s_add_u32 s60, {ws_lo}, s60
    s_addc_u32 s61, {ws_hi}, 0
    s_and_b32 s61, s61, 0xffff
    s_mov_b32 s62, 128
    s_mov_b32 s63, 0x20000
    v_mov_b32 v1, 0
    ''')
    for i in range(4*n):
        A(f'v_mov_b32 v2, s{64+i}')
        A(f'buffer_store_dword v2, v1, s[60:63], 0 offen offset:{4*i}')

def unpack8(A, src, dst):
    for i in range(4):
        A(f'v_lshlrev_b32 v{dst+2*i}, 16, v{src+i}')
        A(f'v_and_b32 v{dst+2*i+1}, 0xffff0000, v{src+i}')
def dpp_add(A, r, ctrl):
    A('s_nop 1')
    A(f'v_add_f32_dpp v{r}, v{r}, v{r} {ctrl} row_mask:0xf bank_mask:0xf')
def swap_op(A, kind, x, y, op='add'):
    A('s_nop 1')
    A(f'v_permlane{kind}_swap_b32 v{x}, v{y}')
    A('s_nop 1')
    A(f'v_{op}_f32 v{x}, v{x}, v{y}')

def img_read_addr(A, t, waddr, base, nt=8, rowform='img'):
    A(f'''
    v_bfe_u32 v{t}, v0, 2, 3
    v_and_b32 v{t+1}, 3, v0
    v_lshlrev_b32 v{t+1}, 3, v{t+1}
    v_lshl_add_u32 v{t+1}, v{t}, 8, v{t+1}
    v_lshrrev_b32 v{t+2}, 5, v0
    v_lshl_add_u32 v{t+1}, v{t+2}, {11 if rowform == 'img' else 12}, v{t+1}
    ''')
    if base: A(f'v_add_u32 v{t+1}, {base}, v{t+1}')
    for n in range(nt):
        A(f'v_xor_b32 v{t+2}, {n}, v{t}')
        A(f'v_lshl_add_u32 v{waddr+n}, v{t+2}, 5, v{t+1}')

def img_dma_chunks(A, t, dst):
    A(f'''
    v_lshrrev_b32 v{t}, 4, v0
    v_and_b32 v{t+1}, 15, v0
    v_lshlrev_b32 v{t+2}, 1, v{t}
    v_xor_b32 v{dst}, v{t+2}, v{t+1}
    v_xor_b32 v{dst+1}, 8, v{dst}
    ''')

def units_of(vg):
    units = []; cur = []
    for it in vg:
        cur.append(it)
        if it[1] is not None: units.append(cur); cur = []
    if cur:
        if units: units[-1] += cur
        else: units.append(cur)
    return units

def core16(A, vm, NQ, acc, wf, hf, waddr, issue_w, issue_act, D=3, extra=None, nch=16, pre_hook=None, order='t', j2off=4096, o=None):
    def emit(lst):
        for ins, tag in lst:
            A(ins)
            if tag is not None: vm.add(tag)
    def group(c):
        g = []
        if c < nch: g += issue_act(c)
        if c + 1 < nch: g += issue_w(c + 1)
        return g
    def reads(c):
        return [f'ds_read_b64_tr_b16 {v(wf(c&1,nt)+2*j2,2)}, v{waddr+nt} offset:{(c*8192 + j2*j2off) & 65535}' for nt in range(8) for j2 in range(2)]
    emit(issue_w(0))
    D0 = getattr(o, 'projD0', 1)
    for c in range(D0): emit(group(c))
    nxt = D0
    if o: stamp(A, o, 1, True)
    if pre_hook: pre_hook()
    if o: stamp(A, o, 2, True)
    A(f's_waitcnt vmcnt({vm.need(lambda x: x[0] == "w" and x[1] <= 0)})')
    A('s_barrier')
    if o: stamp(A, o, 3, True)
    A.ext(reads(0))
    nm = 8*NQ
    for c in range(nch):
        n = vm.need(lambda x: (x[0] == 'w' and x[1] <= c + 1) or (x[0] == 'a' and x[1] <= c))
        A(f's_waitcnt vmcnt({n}) lgkmcnt(0)')
        if c + 1 < nch: A('s_barrier')
        if o and c in (0, 4, 10): stamp(A, o, {0:4, 4:5, 10:6}[c], True)
        if c == 7:
            for nt in range(8): A(f'v_add_u32 v{waddr+nt}, 0x10000, v{waddr+nt}')
        pairs = [(qb, nt) for nt in range(8) for qb in range(NQ)] if order == 't' else [(qb, nt) for qb in range(NQ) for nt in range(8)]
        mf = [f'{MF} {v(acc(qb,nt),4)}, {v(wf(c&1,nt),4)}, {a(hf(c,qb),4)}, {"0" if c == 0 else v(acc(qb,nt),4)}' for qb, nt in pairs]
        rd = reads(c + 1) if c + 1 < nch else []
        vg = []
        for _ in range(2):
            if nxt <= c + D and nxt < nch:
                vg += group(nxt); nxt += 1
        if extra: vg = vg + extra(c)
        units = units_of(vg)
        F = {g: [] for g in range(nm)}
        ug = [(i * (nm - 2)) // len(units) + 1 for i in range(len(units))] if units else []
        for g, u in zip(ug, units): F[g] += u
        free = [g for g in range(nm - 4) if g not in ug]
        per = 1 if len(free) >= len(rd) else 2
        for i, r in enumerate(rd): F[free[i // per]].append((r, None))
        for g in range(nm):
            A(mf[g]); emit(F[g])
    if o: stamp(A, o, 7, True)

def mk_w(wdma, base, stepw, SW, sM, sCW, sWoff, flags=''):
    def issue_w(c):
        return [(f's_add_u32 m0, s{sM}, {base + c*8192}', None),
                (f's_mul_i32 s{sWoff}, s{sCW}, {stepw}', None),
                (f'buffer_load_dwordx4 v{wdma}, {s(SW,4)}, s{sWoff} offen {flags} lds', ('w', c)),
                (f's_add_u32 s{sCW}, s{sCW}, 1', None),
                (f's_and_b32 s{sCW}, s{sCW}, 15', None),
                (f'buffer_load_dwordx4 v{wdma+1}, {s(SW,4)}, s{sWoff} offen offset:1024 {flags} lds', ('w', c))]
    return issue_w

def mk_act(NQ, SA, vq, imm, sCA, sAoff, hf, flags=''):
    def issue_act(c):
        L = [(f's_lshl_b32 s{sAoff}, s{sCA}, 12', None)]
        for qb in range(NQ):
            if qb == 1: L += [(f's_add_u32 s{sCA}, s{sCA}, 1', None), (f's_and_b32 s{sCA}, s{sCA}, 15', None)]
            L.append((f'buffer_load_dwordx4 {a(hf(c,qb),4)}, v{vq[qb]}, {s(SA,4)}, s{sAoff} offen offset:{imm[qb]} {flags}', ('a', c)))
        return L
    return issue_act

def himg_read_addr(A, t, waddr, base, nmat=2):
    A(f'''
    v_lshrrev_b32 v{t}, 2, v0
    v_and_b32 v{t+1}, 3, v0
    v_lshlrev_b32 v{t+1}, 3, v{t+1}
    v_lshl_add_u32 v{t+1}, v{t}, 7, v{t+1}
    v_bfe_u32 v{t}, v0, 3, 2
    ''')
    if base: A(f'v_add_u32 v{t+1}, {base}, v{t+1}')
    for n in range(4):
        A(f'v_xor_b32 v{t+2}, {n}, v{t}')
        A(f'v_lshl_add_u32 v{waddr+n}, v{t+2}, 5, v{t+1}')
        if nmat == 2: A(f'v_add_u32 v{waddr+4+n}, 4096, v{waddr+n}')

def himg_dma_off(A, t, dst, pitch):
    A(f'''
    v_lshrrev_b32 v{t}, 3, v0
    v_and_b32 v{t+1}, 7, v0
    v_bfe_u32 v{t+2}, v0, 4, 2
    v_lshlrev_b32 v{t+2}, 1, v{t+2}
    v_xor_b32 v{t+1}, v{t+1}, v{t+2}
    v_mul_u32_u24 v{t}, {pitch}, v{t}
    v_lshl_add_u32 v{dst}, v{t+1}, 4, v{t}
    ''')
```

```python
from c16 import *

def fragaddr_s(A, dst, qb, sh_blk, tmp):
    A(f's_lshr_b32 s{dst}, s{qb}, 2')
    A(f's_lshl_b32 s{dst}, s{dst}, {sh_blk}')
    A(f's_and_b32 s{tmp}, s{qb}, 3')
    A(f's_lshl_b32 s{tmp}, s{tmp}, 10')
    A(f's_add_u32 s{dst}, s{dst}, s{tmp}')

def code_srd(A, d, start, end, tag):
    A(f"""
    s_getpc_b64 s[{d}:{d+1}]
    L_pc_{tag}:
    s_add_u32 s{d}, s{d}, {start}-L_pc_{tag}
    s_addc_u32 s{d+1}, s{d+1}, {'-1' if tag.startswith('self') else '0'}
    s_and_b32 s{d+1}, s{d+1}, 0xffff
    s_mov_b32 s{d+2}, {end}-{start}
    s_mov_b32 s{d+3}, 0x20000
    """)

def gen_pre(A, name, o):
    kernel_begin(A, name)
    SX, SC, SWM, SH, SQ = 16, 20, 24, 28, 52
    LS, LP, LST, LF = 139264, 140544, 144640, 145152
    A(f"""
    s_cmp_ge_u32 s2, 256
    s_cbranch_scc1 L_end_{name}
    s_load_dwordx2 s[4:5], s[0:1], 0
    s_load_dwordx4 s[8:11], s[0:1], 72
    s_load_dwordx2 s[12:13], s[0:1], 104
    s_load_dwordx2 s[6:7], s[0:1], 24
    """)
    stamp(A, o, 0)
    nself = 0
    if o.selfpf:
        code_srd(A, 48, name, f'L_end_{name}', 'self_' + name)
        A('v_lshlrev_b32 v2, 3, v0')
        A('buffer_load_dwordx2 v[100:101], v2, s[48:51], 0 offen')
        nself = 1
    A(f"""
    v_lshrrev_b32 v1, 6, v0
    v_mov_b32 v60, v0
    v_and_b32 v0, 63, v0
    v_readfirstlane_b32 s15, v1
    s_and_b32 s33, s2, 7
    s_lshr_b32 s34, s2, 3
    s_lshl_b32 s37, s33, 7
    s_lshl_b32 s38, s34, 7
    s_add_u32 s38, s38, 2048
    s_lshr_b32 s58, s34, 1
    s_cmp_eq_u32 s15, 8
    s_cselect_b32 s36, s33, s15
    s_cselect_b32 s37, s38, s37
    s_cselect_b32 s58, 0, s58
    s_cselect_b32 s59, 7, 15
    s_lshl_b32 s35, s15, 14
    s_mul_i32 s39, s36, {64*6144}
    s_add_u32 s39, s39, s37
    s_lshl_b32 s40, s36, 7
    v_lshl_add_u32 v2, v0, 1, s40
    v_lshlrev_b32 v5, 4, v0
    """)
    himg_dma_off(A, 6, 3, 6144)
    def piece():
        A(f"""
        s_lshl_b32 s40, s58, 10
        s_add_u32 m0, s35, s40
        s_and_b32 s41, s58, 7
        s_mul_i32 s41, s41, {8*6144}
        s_lshr_b32 s40, s58, 3
        s_lshl_b32 s40, s40, 10
        s_add_u32 s41, s41, s39
        s_add_u32 s41, s41, s40
        buffer_load_dwordx4 v3, {s(SWM,4)}, s41 offen lds
        s_add_u32 s58, s58, 1
        s_and_b32 s58, s58, 15
        """)
    A(f"""
    s_lshl_b32 s42, s34, 3
    s_add_u32 s42, s42, s15
    s_lshl_b32 s42, s42, 13
    s_add_u32 s43, s42, 4096
    s_waitcnt lgkmcnt(0)
    """)
    srd(A, SC, 's8', 's9', 1024)
    srd(A, SWM, 's10', 's11', 512*6144)
    A(f'buffer_load_ushort v8, v2, {s(SC,4)}, 0 offen')
    piece()
    srd(A, SX, 's4', 's5', 2048*1024)
    A('s_cmp_eq_u32 s15, 8')
    A(f's_cbranch_scc1 L_pl_{name}')
    for i in range(8):
        A(f'buffer_load_dwordx4 {v(64+4*i,4)}, v5, {s(SX,4)}, s{42+(i>>2)} offen offset:{(i&3)*1024}')
    A(f'L_pl_{name}:')
    piece()
    A(f"""
    s_sub_u32 s59, s59, 1
    s_cmp_lg_u32 s59, 0
    s_cbranch_scc1 L_pl_{name}
    s_lshr_b32 s42, s15, 1
    s_lshl_b32 s43, s34, 2
    s_add_u32 s43, s43, s42
    s_and_b32 s44, s15, 1
    s_lshl_b32 s45, s33, 1
    s_add_u32 s45, s45, s44
    s_lshl_b32 s46, s43, 14
    s_lshl_b32 s47, s45, 6
    s_add_u32 s47, s46, s47
    v_and_b32 v10, 15, v0
    v_lshrrev_b32 v11, 4, v0
    v_lshlrev_b32 v12, 10, v10
    v_lshl_add_u32 v12, v11, 3, v12
    buffer_load_dwordx2 v[96:97], v12, {s(SX,4)}, s47 offen
    buffer_load_dwordx2 v[98:99], v12, {s(SX,4)}, s47 offen offset:32
    """)
    srd(A, SQ, 's6', 's7', 512*8192)
    A(f"""
    s_lshl_b32 s48, s34, 3
    s_add_u32 s48, s48, s15
    s_lshl_b32 s48, s48, 14
    s_lshl_b32 s49, s33, 10
    s_add_u32 s48, s48, s49
    s_add_u32 s49, s48, 8192
    s_cmp_lg_u32 s15, 8
    s_cbranch_scc1 L_pf_{name}
    """)
    code_srd(A, SQ, 'attn_kernel', 'L_hot_end_attn', name)
    A(f"""
    s_lshl_b32 s48, s34, 10
    s_add_u32 s49, s48, 32768
    L_pf_{name}:
    buffer_load_dwordx4 v[100:103], v5, {s(SQ,4)}, s48 offen
    buffer_load_dwordx4 v[100:103], v5, {s(SQ,4)}, s49 offen
    """)
    stamp(A, o, 1, True)
    A(f's_mov_b32 s{SH}, s12')
    srd(A, SH, f's{SH}', 's13', H_OFF + 2048*1024)
    A(f"""
    v_lshrrev_b32 v13, 2, v0
    v_and_b32 v14, 3, v0
    v_lshlrev_b32 v14, 3, v14
    v_lshl_add_u32 v14, v13, 7, v14
    v_bfe_u32 v13, v0, 3, 2
    v_add_u32 v14, s35, v14
    """)
    for n in range(4):
        A(f'v_xor_b32 v15, {n}, v13')
        A(f'v_lshl_add_u32 v{16+n}, v15, 5, v14')
    for i in range(16): A(f'v_mov_b32 v{32+i}, 0')
    A(f"""
    s_waitcnt vmcnt(12)
    v_lshlrev_b32 v8, 16, v8
    v_mul_f32 v9, {f2u(-LOG2E)}, v8
    v_exp_f32 v9, v9
    s_lshl_b32 s48, s15, 7
    s_add_u32 s48, s48, {LS}
    v_add_f32 v9, 1.0, v9
    v_rcp_f32 v7, v9
    v_lshl_add_u32 v13, v0, 1, s48
    v_fma_f32 v9, -v9, v7, 1.0
    v_fmac_f32 v7, v9, v7
    v_mul_f32 v8, v8, v7
    v_cvt_pk_bf16_f32 v8, v8, v8
    ds_write_b16 v13, v8
    v_lshl_add_u32 v13, v11, 3, s48
    v_mov_b32 v14, 0x3f803f80
    s_waitcnt lgkmcnt(0)
    ds_read_b64 v[24:25], v13
    ds_read_b64 v[26:27], v13 offset:32
    ds_read_b64 v[28:29], v13 offset:64
    ds_read_b64 v[30:31], v13 offset:96
    s_cmp_eq_u32 s15, 8
    s_cbranch_scc1 L_w8c_{name}
    """)
    stamp(A, o, 2, True)
    for i in range(8):
        b = 64+4*i
        for j in range(4):
            A(f'v_dot2c_f32_bf16 v{32+i}, v{b+j}, v14')
            A(f'v_dot2c_f32_bf16 v{40+i}, v{b+j}, v{b+j}')
    A('s_nop 1')
    for j in range(0, 16, 2): A(f'v_permlane16_swap_b32 v{32+j}, v{33+j}')
    for j in range(0, 16, 2): A(f'v_add_f32 v{32+j}, v{32+j}, v{33+j}')
    for j in range(0, 16, 4): A(f'v_permlane32_swap_b32 v{32+j}, v{34+j}')
    for j in range(0, 16, 4): A(f'v_add_f32 v{32+j}, v{32+j}, v{34+j}')
    for c in ('row_ror:8', 'row_ror:4', 'row_ror:2', 'row_ror:1'):
        for r in (32, 36, 40, 44): A(f'v_add_f32_dpp v{r}, v{r}, v{r} {c} row_mask:0xf bank_mask:0xf')
    A(f's_mov_b32 s56, {f2u(1/512)}')
    for r in (0, 4):
        A(f"""
        v_mul_f32 v{48+r}, s56, v{32+r}
        v_mul_f32 v{50+r}, v{48+r}, v{48+r}
        v_fma_f32 v{50+r}, v{40+r}, s56, -v{50+r}
        v_max_f32 v{50+r}, 0, v{50+r}
        v_add_f32 v{50+r}, {f2u(1e-5)}, v{50+r}
        v_rsq_f32 v{49+r}, v{50+r}
        """)
    A(f"""
    s_lshl_b32 s48, s15, 6
    s_add_u32 s48, s48, {LST}
    v_lshl_add_u32 v13, v11, 3, s48
    ds_write_b64 v13, v[48:49]
    ds_write_b64 v13, v[52:53] offset:32
    L_w8c_{name}:
    s_waitcnt vmcnt(4)
    """)
    stamp(A, o, 3, True)
    for mat in range(2):
        for ks in range(2):
            for nt in range(4):
                for j2 in range(2):
                    A(f'ds_read_b64_tr_b16 {v(104+((mat*2+ks)*4+nt)*4+2*j2,2)}, v{16+nt} offset:{mat*8192 + ks*4096 + j2*2048}')
    for mat in range(2):
        A(f's_waitcnt lgkmcnt({15 if mat == 0 else 0})')
        for ks in range(2):
            for nt in range(4):
                A(f'{MF} {v(64+(mat*4+nt)*4,4)}, {v(104+((mat*2+ks)*4+nt)*4,4)}, {v(24+4*ks,4)}, {"0" if ks == 0 else v(64+(mat*4+nt)*4,4)}')
    stamp(A, o, 4, True)
    A(f"""
    s_lshl_b32 s48, s15, 9
    s_add_u32 s48, s48, {LP}
    v_lshl_add_u32 v13, v11, 4, s48
    v_cmp_eq_u32 vcc, 0, v10
    s_lshl_b32 s48, s33, 13
    s_lshl_b32 s49, s34, 8
    s_add_u32 s48, s48, s49
    s_add_u32 s48, s48, {MODP_OFF}
    v_lshlrev_b32 v15, 4, v11
    s_and_saveexec_b64 s[50:51], vcc
    s_cmp_eq_u32 s15, 8
    s_cbranch_scc1 L_w8d_{name}
    """)
    for nt in range(8): A(f'ds_write_b128 v13, {v(64+nt*4,4)} offset:{nt*64}')
    stamp(A, o, 5, True)
    A(f"""
    s_mov_b64 exec, s[50:51]
    v_lshlrev_b32 v13, 2, v60
    v_add_u32 v13, {LP}, v13
    s_waitcnt lgkmcnt(0)
    s_barrier
    s_cmp_ge_u32 s15, 2
    s_cbranch_scc1 L_skip_{name}
    """)
    for kb in range(8): A(f'ds_read_b32 v{32+kb}, v13 offset:{kb*512}')
    A('s_waitcnt lgkmcnt(0)')
    for kb in range(0, 8, 2): A(f'v_add_f32 v{32+kb}, v{32+kb}, v{33+kb}')
    A(f"""
    v_add_f32 v32, v32, v34
    v_add_f32 v36, v36, v38
    v_add_f32 v32, v32, v36
    v_cvt_f32_u32 v33, s15
    v_cvt_pk_bf16_f32 v32, v32, v32
    v_and_b32 v32, 0xffff0000, v32
    v_add_f32 v32, v32, v33
    v_mul_f32 v32, {f2u(QSCALE)}, v32
    ds_write_b32 v13, v32 offset:{LF-LP}
    L_skip_{name}:
    s_lshl_b32 s48, s42, 7
    s_add_u32 s48, s48, {LST}
    v_lshl_add_u32 v13, v10, 3, s48
    ds_read_b64 v[44:45], v13
    s_lshl_b32 s48, s44, 7
    s_add_u32 s48, s48, {LF}
    v_lshl_add_u32 v13, v11, 4, s48
    s_waitcnt vmcnt(2)
    """)
    unpack8(A, 96, 16)
    A('s_waitcnt lgkmcnt(0)')
    A('s_barrier')
    A(f"""
    ds_read_b128 v[24:27], v13
    ds_read_b128 v[28:31], v13 offset:64
    ds_read_b128 v[32:35], v13 offset:256
    ds_read_b128 v[36:39], v13 offset:320
    """)
    stamp(A, o, 6, True)
    for j in range(8):
        A(f'v_sub_f32 v{16+j}, v{16+j}, v44')
        A(f'v_mul_f32 v{16+j}, v{16+j}, v45')
    A(f"""
    s_lshl_b32 s46, s34, 16
    s_lshl_b32 s47, s45, 12
    s_add_u32 s47, s46, s47
    s_lshl_b32 s46, s42, 10
    s_add_u32 s47, s47, s46
    s_add_u32 s47, s47, {H_OFF}
    s_waitcnt lgkmcnt(0)
    """)
    for j in range(8): A(f'v_fmac_f32 v{24+j}, v{16+j}, v{32+j}')
    for i in range(4): A(f'v_cvt_pk_bf16_f32 v{40+i}, v{24+2*i}, v{25+2*i}')
    A(f"""
    buffer_store_dwordx4 v[40:43], v5, {s(SH,4)}, s47 offen {o.stflags}
    s_branch L_fin_{name}
    L_w8d_{name}:
    """)
    for nt in range(4): A(f'buffer_store_dwordx4 {v(64+nt*4,4)}, v15, {s(SH,4)}, s48 offen offset:{nt*64} {o.stflags}')
    A('s_mov_b64 exec, s[50:51]')
    A(f'L_fin_{name}:')
    stamp(A, o, 7, True)
    stamp(A, o, 1)
    dump_stamps(A, o, 2, 's12', 's13', 's15', 0, 9)
    A(f'L_end_{name}:')
    A('s_endpgm')
    return (name, 256, 576, 147456, 168, 96, 168)

def gen_red(A, name, o):
    kernel_begin(A, name)
    SX, SP, SM, SW = 16, 20, 24, 28
    A(f'''
    s_cmp_ge_u32 s2, 256
    s_cbranch_scc1 L_end_{name}
    s_load_dwordx2 s[4:5], s[0:1], 0
    s_load_dwordx2 s[12:13], s[0:1], 104
    s_load_dwordx4 s[44:47], s[0:1], 48
    s_load_dwordx2 s[48:49], s[0:1], 64
    ''')
    stamp(A, o, 0)
    A(f'''
    v_lshrrev_b32 v1, 6, v0
    v_and_b32 v2, 7, v0
    v_lshrrev_b32 v3, 3, v0
    v_readfirstlane_b32 s15, v1
    s_lshr_b32 s36, s2, 3
    s_and_b32 s37, s2, 1
    s_lshl_b32 s36, s36, 16
    s_lshl_b32 s37, s37, 7
    s_add_u32 s36, s36, s37
    s_bfe_u32 s37, s2, 0x20001
    s_lshl_b32 s37, s37, 10
    s_add_u32 s36, s36, s37
    s_lshl_b32 s35, s2, 13
    v_lshrrev_b32 v6, 2, v3
    v_and_b32 v7, 3, v3
    v_lshlrev_b32 v4, 12, v6
    v_lshl_add_u32 v4, v7, 8, v4
    v_lshl_add_u32 v4, v2, 4, v4
    v_lshlrev_b32 v6, 5, v6
    v_lshl_add_u32 v6, v7, 2, v6
    v_lshlrev_b32 v5, 10, v2
    v_lshl_add_u32 v5, v6, 1, v5
    v_lshlrev_b32 v6, 2, v6
    s_waitcnt lgkmcnt(0)
    s_add_u32 s{SP}, s12, {PART_OFF}
    s_addc_u32 s{SP+1}, s13, 0
    s_add_u32 s{SW}, s12, {X1_OFF}
    s_addc_u32 s{SW+1}, s13, 0
    ''')
    srd(A, SP, f's{SP}', f's{SP+1}', 16 << 20)
    for sp in range(8):
        A(f's_add_u32 s40, s36, {sp << 21}')
        A(f'buffer_load_dwordx4 {v(32+4*sp,4)}, v4, {s(SP,4)}, s40 offen')
    srd(A, SX, 's4', 's5', 2048*1024)
    srd(A, SM, 's12', 's13', 6*2048)
    srd(A, SW, f's{SW}', f's{SW+1}', 4 << 20)
    A(f'buffer_load_dwordx2 v[64:65], v5, {s(SX,4)}, s35 offen')
    A(f'buffer_load_dwordx2 v[66:67], v5, {s(SX,4)}, s35 offen offset:32')
    for m, base in ((2, 68), (4, 76), (3, 84)):
        A(f's_mov_b32 s40, {m*2048}')
        A(f'buffer_load_dwordx4 {v(base,4)}, v6, {s(SM,4)}, s40 offen')
        A(f'buffer_load_dwordx4 {v(base+4,4)}, v6, {s(SM,4)}, s40 offen offset:64')
    npf = 0
    if o.prefetch:
        npf = red_prefetch(A, o, name)
    for sp in range(8):
        A(f's_waitcnt vmcnt({15+npf-sp})')
        if sp == 0: unpack8(A, 32, 8)
        else:
            unpack8(A, 32+4*sp, 16)
            for j in range(8): A(f'v_add_f32 v{8+j}, v{8+j}, v{16+j}')
    A(f's_waitcnt vmcnt({4+npf})')
    unpack8(A, 64, 16)
    for j in range(8): A(f'v_fmac_f32 v{16+j}, v{68+j}, v{8+j}')
    for i in range(4): A(f'v_cvt_pk_bf16_f32 v{24+i}, v{16+2*i}, v{17+2*i}')
    A(f'buffer_store_dwordx2 v[24:25], v5, {s(SW,4)}, s35 offen')
    A(f'buffer_store_dwordx2 v[26:27], v5, {s(SW,4)}, s35 offen offset:32')
    unpack8(A, 24, 16)
    A(f'''
    s_lshl_b32 s40, s15, 3
    v_lshl_add_u32 v7, v2, 6, s40
    v_lshlrev_b32 v1, 6, v2
    v_add_f32 v8, v16, v17
    v_mul_f32 v9, v16, v16
    v_fmac_f32 v9, v17, v17
    ''')
    for j in range(2, 8):
        A(f'v_add_f32 v8, v8, v{16+j}')
        A(f'v_fmac_f32 v9, v{16+j}, v{16+j}')
    A('s_nop 1')
    A('v_add_f32_dpp v8, v8, v8 row_ror:8 row_mask:0xf bank_mask:0xf')
    A('v_add_f32_dpp v9, v9, v9 row_ror:8 row_mask:0xf bank_mask:0xf')
    swap_op(A, 16, 8, 9)
    A('v_mov_b32 v9, v8')
    swap_op(A, 32, 8, 9)
    A(f'''
    v_bfe_u32 v10, v0, 4, 1
    v_lshl_add_u32 v7, v10, 2, v7
    ds_write_b32 v7, v8
    s_waitcnt lgkmcnt(0)
    s_barrier
    ds_read_b128 v[32:35], v1
    ds_read_b128 v[36:39], v1 offset:16
    ds_read_b128 v[40:43], v1 offset:32
    ds_read_b128 v[44:47], v1 offset:48
    s_waitcnt lgkmcnt(0)
    ''')
    for j in range(1, 8):
        A(f'v_add_f32 v32, v32, v{32+2*j}')
        A(f'v_add_f32 v33, v33, v{33+2*j}')
    A(f'''
    s_mov_b32 s40, {f2u(1/512)}
    v_mul_f32 v8, s40, v32
    v_mul_f32 v9, v8, v8
    v_fma_f32 v9, v33, s40, -v9
    v_max_f32 v9, 0, v9
    v_add_f32 v9, {f2u(1e-5)}, v9
    v_rsq_f32 v12, v9
    s_waitcnt vmcnt({2+npf})
    ''')
    for j in range(8):
        A(f'v_sub_f32 v{16+j}, v{16+j}, v8')
        A(f'v_add_f32 v{76+j}, 1.0, v{76+j}')
        A(f'v_mul_f32 v{16+j}, v{16+j}, v12')
        A(f'v_fma_f32 v{16+j}, v{16+j}, v{76+j}, v{84+j}')
    for i in range(4): A(f'v_cvt_pk_bf16_f32 v{28+i}, v{16+2*i}, v{17+2*i}')
    A(f's_add_u32 s40, s36, {H2_OFF - X1_OFF}')
    A(f'buffer_store_dwordx4 v[28:31], v4, {s(SW,4)}, s40 offen {o.stflags}')
    stamp(A, o, 1)
    dump_stamps(A, o, 2, 's12', 's13', 's15', 3, 8)
    A(f'L_end_{name}:')
    A('s_endpgm')
    return (name, 256, 512, 1024, 104, 96, 104)

def red_prefetch(A, o, name):
    A(f'''
    s_and_b32 s50, s2, 7
    s_lshr_b32 s51, s2, 3
    s_mul_i32 s52, s50, {31*745}
    s_lshr_b32 s52, s52, 13
    s_lshl_b32 s52, s52, 7
    s_mul_i32 s53, s51, {16*2752}
    s_add_u32 s52, s52, s53
    v_lshrrev_b32 v92, 5, v0
    v_and_b32 v93, 31, v0
    v_mul_u32_u24 v92, 2752, v92
    v_lshl_add_u32 v92, v93, 4, v92
    s_mov_b32 s56, s44
    ''')
    srd(A, 56, 's56', 's45', 512*2752)
    A('buffer_load_dwordx4 v[96:99], v92, s[56:59], s52 offen')
    A('s_mov_b32 s56, s46')
    A('s_and_b32 s57, s47, 0xffff')
    A('buffer_load_dwordx4 v[96:99], v92, s[56:59], s52 offen')
    A(f'''
    s_and_b32 s52, s50, 1
    s_lshl_b32 s52, s52, 9
    s_mul_i32 s53, s51, {43*1024}
    s_add_u32 s52, s52, s53
    v_lshrrev_b32 v92, 5, v0
    v_lshlrev_b32 v92, 10, v92
    v_lshl_add_u32 v92, v93, 4, v92
    s_mov_b32 s56, s48
    s_and_b32 s57, s49, 0xffff
    s_mov_b32 s58, {1376*1024}
    ''')
    for i in range(3):
        A('buffer_load_dwordx4 v[96:99], v92, s[56:59], s52 offen')
        A('s_add_u32 s52, s52, 16384')
    A(f'''
    s_getpc_b64 s[56:57]
    L_pc_{name}:
    s_add_u32 s56, s56, glu_kernel-L_pc_{name}
    s_addc_u32 s57, s57, 0
    s_and_b32 s57, s57, 0xffff
    s_mov_b32 s58, L_end_down_kernel-glu_kernel
    s_lshl_b32 s53, s51, 11
    v_lshlrev_b32 v92, 2, v0
    buffer_load_dword v100, v92, s[56:59], s53 offen
    ''')
    return 6

def gen_oproj(A, name, o):
    kernel_begin(A, name)
    SW, SA, SP = 16, 20, 24
    A(f'''
    s_cmp_ge_u32 s2, 256
    s_cbranch_scc1 L_end_{name}
    s_load_dwordx2 s[4:5], s[0:1], 32
    s_load_dwordx2 s[12:13], s[0:1], 104
    ''')
    stamp(A, o, 0)
    A(f'''
    v_lshrrev_b32 v1, 6, v0
    v_and_b32 v0, 63, v0
    v_readfirstlane_b32 s15, v1
    s_and_b32 s33, s2, 7
    s_lshr_b32 s34, s2, 5
    s_bfe_u32 s35, s2, 0x20003
    v_lshlrev_b32 v20, 4, v0
    ''')
    img_dma_chunks(A, 2, 18)
    A(f'''
    s_lshl_b32 s40, s15, 3
    v_add_u32 v2, s40, v2
    v_lshlrev_b32 v2, 10, v2
    v_lshl_add_u32 v18, v18, 4, v2
    v_lshl_add_u32 v19, v19, 4, v2
    v_add_u32 v19, {4*1024-1024}, v19
    s_lshl_b32 s36, s15, 11
    s_lshl_b32 s38, s35, 2
    s_add_u32 s37, s34, s38
    s_and_b32 s37, s37, 15
    s_mov_b32 s38, s37
    s_lshl_b32 s41, s34, 2
    s_add_u32 s41, s41, s15
    s_waitcnt lgkmcnt(0)
    s_lshl_b32 s40, s33, 19
    s_lshl_b32 s42, s35, 8
    s_add_u32 s40, s40, s42
    s_add_u32 s{SW}, s4, s40
    s_addc_u32 s{SW+1}, s5, 0
    s_lshl_b32 s40, s41, 19
    s_lshl_b32 s42, s33, 16
    s_add_u32 s40, s40, s42
    s_add_u32 s40, s40, {O_OFF}
    s_add_u32 s{SA}, s12, s40
    s_addc_u32 s{SA+1}, s13, 0
    ''')
    srd(A, SW, f's{SW}', f's{SW+1}', 511*1024 + 256)
    srd(A, SA, f's{SA}', f's{SA+1}', 65536)
    def late():
        img_read_addr(A, 2, 10, 0)
        A(f'''
        s_lshl_b32 s40, s33, 21
        s_lshl_b32 s42, s41, 16
        s_add_u32 s40, s40, s42
        s_lshl_b32 s42, s35, 14
        s_add_u32 s40, s40, s42
        s_add_u32 s40, s40, {PART_OFF}
        s_add_u32 s{SP}, s12, s40
        s_addc_u32 s{SP+1}, s13, 0
        ''')
        srd(A, SP, f's{SP}', f's{SP+1}', 16384)
    acc = lambda qb, nt: 96 + (qb*8+nt)*4
    wf = lambda b, nt: 32 + (b*8+nt)*4
    hf = lambda c, qb: (c*4+qb)*4
    vm = VM()
    core16(A, vm, 4, acc, wf, hf, 10, mk_w(18, 0, 32*1024, SW, 36, 37, 43, o.wflags), mk_act(4, SA, [20]*4, [0,1024,2048,3072], 38, 44, hf), D=o.projD, pre_hook=late, order=o.order, o=o)
    stamp(A, o, 1)
    A('s_nop 7')
    n = 0
    for m in range(4):
        for qb in range(4):
            pk = 32 + (n % 16)*4; n += 1
            b = acc(qb, 2*m)
            if qb == 0: A(f's_mov_b32 s44, {m*4096}')
            for r in range(0, 8, 2): A(f'v_cvt_pk_bf16_f32 v{pk+r//2}, v{b+r}, v{b+r+1}')
            A(f'buffer_store_dwordx4 {v(pk,4)}, v20, {s(SP,4)}, s44 offen offset:{qb*1024} {o.stflags}')
    if o.timing: A('s_waitcnt vmcnt(0)')
    stamp(A, o, 2)
    dump_stamps(A, o, 3, 's12', 's13', 's15', 2)
    A(f'L_end_{name}:')
    A('s_endpgm')
    return (name, 256, 256, 131072, 512, 96, 256)

def gen_glu(A, name, o):
    kernel_begin(A, name)
    SW, SA, SP = 16, 20, 24
    A(f'''
    s_and_b32 s33, s2, 7
    s_lshr_b32 s34, s2, 3
    s_mul_i32 s33, s33, 31
    s_add_u32 s33, s33, s34
    s_cmp_ge_u32 s2, 248
    s_cbranch_scc1 L_end_{name}
    s_cmp_ge_u32 s33, 242
    s_cbranch_scc1 L_end_{name}
    s_load_dwordx4 s[4:7], s[0:1], 48
    s_load_dwordx2 s[12:13], s[0:1], 104
    ''')
    stamp(A, o, 0)
    A(f'''
    v_lshrrev_b32 v1, 6, v0
    v_and_b32 v0, 63, v0
    v_readfirstlane_b32 s15, v1
    s_mul_i32 s35, s33, 745
    s_lshr_b32 s35, s35, 13
    s_mul_i32 s34, s35, 11
    s_sub_u32 s34, s33, s34
    s_lshl_b32 s41, s34, 2
    s_add_u32 s41, s41, s15
    s_mul_i32 s41, s41, 3
    v_lshlrev_b32 v24, 4, v0
    ''')
    for qb in range(3):
        A(f's_add_u32 s42, s41, {qb}')
        fragaddr_s(A, 40, 42, 16, 43)
        A(f'v_add_u32 v{20+qb}, s40, v24')
    himg_dma_off(A, 2, 18, 2752)
    A(f'''
    s_and_b32 s40, s15, 1
    s_mul_i32 s40, s40, {16*2752}
    v_add_u32 v18, s40, v18
    v_add_u32 v19, {8*2752-1024}, v18
    s_lshl_b32 s36, s15, 11
    s_mul_i32 s37, s33, 3
    s_and_b32 s37, s37, 15
    s_mov_b32 s38, s37
    s_waitcnt lgkmcnt(0)
    s_cmp_ge_u32 s15, 2
    s_cselect_b32 s4, s6, s4
    s_cselect_b32 s5, s7, s5
    s_lshl_b32 s40, s35, 7
    s_add_u32 s{SW}, s4, s40
    s_addc_u32 s{SW+1}, s5, 0
    s_sub_u32 s{SW+2}, {512*2752}, s40
    s_and_b32 s{SW+1}, s{SW+1}, 0xffff
    s_mov_b32 s{SW+3}, 0x20000
    s_add_u32 s{SA}, s12, {H2_OFF}
    s_addc_u32 s{SA+1}, s13, 0
    ''')
    srd(A, SA, f's{SA}', f's{SA+1}', 2 << 20)
    def late():
        himg_read_addr(A, 2, 10, 0)
        A(f'''
        s_add_u32 s{SP}, s12, {A_OFF}
        s_addc_u32 s{SP+1}, s13, 0
        v_add_u32 v25, 4096, v24
        ''')
        for qb in range(3):
            A(f'''
            s_add_u32 s42, s41, {qb}
            s_lshr_b32 s40, s42, 2
            s_mul_i32 s40, s40, {43*4096}
            s_and_b32 s42, s42, 3
            s_lshl_b32 s42, s42, 10
            s_add_u32 s40, s40, s42
            s_lshl_b32 s42, s35, 13
            s_add_u32 s{45+qb}, s40, s42
            ''')
        srd(A, SP, f's{SP}', f's{SP+1}', 128*43*1024)
    acc = lambda qb, nt: 96 + (qb*8+nt)*4
    wf = lambda b, nt: 32 + (b*8+nt)*4
    hf = lambda c, qb: (c*3+qb)*4
    vm = VM()
    core16(A, vm, 3, acc, wf, hf, 10, mk_w(18, 0, 32*2752, SW, 36, 37, 43, o.wflags), mk_act(3, SA, [20,21,22], [0,0,0], 38, 44, hf), D=o.projD, pre_hook=late, order=o.order, j2off=2048, o=o)
    stamp(A, o, 1)
    A('s_nop 7')
    for m in range(2):
        if m == 1:
            A('s_cmp_eq_u32 s35, 21')
            A(f's_cbranch_scc1 L_skip_{name}')
        for qb in range(3):
            b = acc(qb, 2*m); pk = 32 + (m*3+qb)*4
            for r in range(8): A(f'v_mul_f32 v{b+r}, v{b+r}, v{b+16+r}')
            for r in range(0, 8, 2): A(f'v_cvt_pk_bf16_f32 v{pk+r//2}, v{b+r}, v{b+r+1}')
            A(f'buffer_store_dwordx4 {v(pk,4)}, v{24+m}, {s(SP,4)}, s{45+qb} offen {o.stflags}')
    A(f'L_skip_{name}:')
    if o.timing: A('s_waitcnt vmcnt(0)')
    stamp(A, o, 2)
    dump_stamps(A, o, 3, 's12', 's13', 's15', 4)
    A(f'L_end_{name}:')
    A('s_endpgm')
    return (name, 248, 256, 131072, 192+192, 96, 192)

def gen_down(A, name, o):
    kernel_begin(A, name)
    SW, SA, SX, SM, SO = 16, 20, 28, 48, 52
    NK = 11
    A(f'''
    s_cmp_ge_u32 s2, 256
    s_cbranch_scc1 L_end_{name}
    s_load_dwordx2 s[4:5], s[0:1], 64
    s_load_dwordx2 s[6:7], s[0:1], 88
    s_load_dwordx2 s[12:13], s[0:1], 104
    ''')
    stamp(A, o, 0)
    A(f'''
    v_lshrrev_b32 v1, 6, v0
    v_mov_b32 v24, v0
    v_and_b32 v0, 63, v0
    v_readfirstlane_b32 s15, v1
    s_bfe_u32 s33, s2, 0x20001
    s_lshr_b32 s34, s2, 5
    s_lshl_b32 s33, s33, 3
    s_add_u32 s34, s34, s33
    s_bfe_u32 s35, s2, 0x20003
    s_and_b32 s33, s2, 1
    s_lshl_b32 s33, s33, 2
    s_add_u32 s35, s35, s33
    v_lshlrev_b32 v20, 4, v0
    s_lshl_b32 s36, s15, 15
    ''')
    himg_dma_off(A, 2, 26, 1024)
    A(f'''
    v_add_u32 v27, {8192-1024}, v26
    v_add_u32 v28, {2*(8192-1024)}, v26
    v_add_u32 v29, {3*(8192-1024)}, v26
    s_mul_i32 s37, s15, {NK*32*1024}
    s_mul_i32 s38, s15, {NK*4096}
    s_waitcnt lgkmcnt(0)
    s_lshl_b32 s40, s35, 7
    s_add_u32 s{SW}, s4, s40
    s_addc_u32 s{SW+1}, s5, 0
    s_sub_u32 s{SW+2}, {1376*1024}, s40
    s_and_b32 s{SW+1}, s{SW+1}, 0xffff
    s_mov_b32 s{SW+3}, 0x20000
    s_mul_i32 s41, s34, {4*43*1024}
    s_add_u32 s41, s41, {A_OFF}
    s_add_u32 s{SA}, s12, s41
    s_addc_u32 s{SA+1}, s13, 0
    ''')
    srd(A, SA, f's{SA}', f's{SA+1}', 4*43*1024)
    acc = lambda qb, nt: 64 + (qb*4+nt)*4
    wf = lambda ks, nt: 32 + ((ks % 2)*4+nt)*4
    hf = lambda ks, qb: (ks*4+qb)*4
    vm = VM()
    def issue(ks):
        L = [(f's_add_u32 m0, s36, {(ks % 8)*4096}', None), (f's_add_u32 s43, s37, {ks*32*1024}', None)]
        for p in range(4):
            L.append((f'buffer_load_dwordx4 v{26+p}, {s(SW,4)}, s43 offen offset:{p*1024} {o.wflags} lds', ('w', ks)))
        L.append((f's_add_u32 s44, s38, {ks*4096}', None))
        for qb in range(4):
            L.append((f'buffer_load_dwordx4 {a(hf(ks,qb),4)}, v20, {s(SA,4)}, s44 offen offset:{qb*1024}', ('a', ks)))
        return L
    def emit(lst):
        for ins, tag in lst:
            A(ins)
            if tag is not None: vm.add(tag)
    def reads(ks):
        return [f'ds_read_b64_tr_b16 {v(wf(ks,nt)+2*j2,2)}, v{10+nt} offset:{(ks % 8)*4096 + j2*2048}' for nt in range(4) for j2 in range(2)]
    D = o.downD
    for ks in range(D): emit(issue(ks))
    himg_read_addr(A, 2, 10, 's36', nmat=1)
    A(f'''
    v_lshrrev_b32 v2, 3, v24
    v_and_b32 v3, 7, v24
    v_lshlrev_b32 v14, 10, v2
    v_lshl_add_u32 v14, v3, 4, v14
    v_lshlrev_b32 v15, 5, v3
    v_mul_u32_u24 v16, 272, v2
    v_add_u32 v16, v16, v15
    v_add_u32 v18, 0x10000, v16
    v_and_b32 v2, 15, v0
    v_lshrrev_b32 v3, 4, v0
    v_mul_u32_u24 v17, 272, v2
    v_lshl_add_u32 v17, v3, 4, v17
    v_add_u32 v17, s36, v17
    s_lshl_b32 s41, s34, 16
    s_add_u32 s41, s41, s40
    s_add_u32 s{SO}, s6, s41
    s_addc_u32 s{SO+1}, s7, 0
    s_add_u32 s41, s41, {X1_OFF}
    s_add_u32 s{SX}, s12, s41
    s_addc_u32 s{SX+1}, s13, 0
    s_lshl_b32 s39, s35, 8
    s_add_u32 s39, s39, {5*2048}
    s_mov_b32 s46, 32768
    ''')
    srd(A, SX, f's{SX}', f's{SX+1}', 63*1024 + 128)
    srd(A, SO, f's{SO}', f's{SO+1}', 63*1024 + 128)
    srd(A, SM, 's12', 's13', 6*2048)
    A(f's_waitcnt vmcnt({vm.need(lambda x: x[0]=="w" and x[1] <= 0)})')
    A.ext(reads(0))
    for ks in range(NK):
        n = vm.need(lambda x: (x[0] == 'w' and x[1] <= ks+1) or (x[0] == 'a' and x[1] <= ks))
        A(f's_waitcnt vmcnt({n}) lgkmcnt(0)')
        if ks == NK-1:
            A('s_cmp_eq_u32 s15, 3')
            A(f's_cbranch_scc1 L_skipk_{name}')
        rd = reads(ks+1) if ks+1 < NK else []
        vg = issue(ks+D) if ks+D < NK else []
        if ks + D == NK:
            vg = [(f'buffer_load_dwordx4 v[128:131], v14, {s(SX,4)}, 0 offen', ('x', 0)),
                  (f'buffer_load_dwordx4 v[132:135], v14, {s(SX,4)}, s46 offen', ('x', 0)),
                  (f'buffer_load_dwordx4 v[136:139], v15, {s(SM,4)}, s39 offen', ('x', 0)),
                  (f'buffer_load_dwordx4 v[140:143], v15, {s(SM,4)}, s39 offen offset:16', ('x', 0))]
        units = units_of(vg)
        g = 0
        for nt in range(4):
            for qb in range(4):
                cc = '0' if ks == 0 else v(acc(qb,nt),4)
                A(f'{MF} {v(acc(qb,nt),4)}, {v(wf(ks,nt),4)}, {a(hf(ks,qb),4)}, {cc}')
                if g < 4: A.ext(rd[2*g:2*g+2])
                elif g - 4 < len(units): emit(units[g-4])
                g += 1
    A(f'L_skipk_{name}:')
    stamp(A, o, 1)
    A('s_nop 7')
    for qb in range(4):
        for nt in range(4):
            A(f'ds_write_b128 v17, {v(acc(qb,nt),4)} offset:{qb*16*272 + nt*64}')
    A('s_waitcnt lgkmcnt(0)')
    A('s_barrier')
    for p in range(2):
        for w in range(4):
            base = 64 + (p*4+w)*8
            off = (w & 1)*32768 + p*32*272
            ar = 18 if w >= 2 else 16
            A(f'ds_read_b128 {v(base,4)}, v{ar} offset:{off}')
            A(f'ds_read_b128 {v(base+4,4)}, v{ar} offset:{off+16}')
    A('s_waitcnt vmcnt(0)')
    for p in range(2):
        A(f's_waitcnt lgkmcnt({8 if p == 0 else 0})')
        b = 64 + p*32
        unpack8(A, 128+4*p, 32)
        for j in range(8):
            A(f'v_add_f32 v{b+j}, v{b+j}, v{b+8+j}')
            A(f'v_add_f32 v{b+16+j}, v{b+16+j}, v{b+24+j}')
            A(f'v_add_f32 v{b+j}, v{b+j}, v{b+16+j}')
            A(f'v_fmac_f32 v{32+j}, v{136+j}, v{b+j}')
        for i in range(4): A(f'v_cvt_pk_bf16_f32 v{40+4*p+i}, v{32+2*i}, v{33+2*i}')
        A(f'buffer_store_dwordx4 {v(40+4*p,4)}, v14, {s(SO,4)}, {"s46" if p else "0"} offen {o.stflags}')
    if o.timing: A('s_waitcnt vmcnt(0)')
    stamp(A, o, 2)
    dump_stamps(A, o, 3, 's12', 's13', 's15', 5)
    A(f'L_end_{name}:')
    A('s_endpgm')
    return (name, 256, 256, 131072, 144+176, 96, 144)
```

```python
import sys
from c16 import *
import k16, a16
def mkpat(s): return s.split()
class Opt:
    timing = False
    drop = None
    projD = 2; downD = 5
    wflags = ''; kvflags = 'nt'; stflags = ''
    prefetch = True
    order = 't'; qkorder = 'chain'; pvorder = 'dt'
    only = None
    rotq = 1; rotx = 0; selfpf = True; projD0 = 1
    pat = None
def default_pat():
    return mkpat('''e vv e vv e vc e vv e vc e vv e vc e vv
                    e vc e vv e cLe c e e c e e c e eLc B
                    me kk e kc e kk e kc e kk e c e eLc e e
                    c e e c e e c D Lx D . D yz D o tW''')
def build(o):
    if o.pat is None: o.pat = default_pat()
    A = Asm()
    A('.amdgcn_target "amdgcn-amd-amdhsa--gfx950"')
    A('.text')
    gens = [('pre_kernel', k16.gen_pre), ('attn_kernel', a16.gen_attn), ('oproj_kernel', k16.gen_oproj),
            ('red_kernel', k16.gen_red), ('glu_kernel', k16.gen_glu), ('down_kernel', k16.gen_down)]
    ks = []
    for n, g in gens:
        n0 = len(A.lines)
        ks.append(g(A, n, o))
        kd = getattr(o, 'kdrop', None)
        if kd and n.startswith(kd[0]):
            import re
            A.lines[n0:] = [l for l in A.lines[n0:] if not re.search(kd[1], l)]
    txt = HEADER
    for (n, grid, blk, lds, nv, ns, acc) in ks:
        if o.only is None or n.split('_')[0] in o.only:
            txt += f'; @launch kernel={n} grid=({grid},1,1) block=({blk},1,1) lds={lds}\n'
    txt += A.text() + '.section .rodata,"a"\n'
    for (n, grid, blk, lds, nv, ns, acc) in ks:
        txt += '.p2align 6\n' + kernel_desc(n, nv, ns, acc)
    return txt
if __name__ == '__main__':
    o = Opt()
    for kv in sys.argv[2:]:
        k, val = kv.split('=', 1)
        setattr(o, k, eval(val))
    open(sys.argv[1], 'w').write(build(o))
```

```python
from c16 import *

VKADDR = 4
VVADDR = 8
VKDMA = 16
VVDMA = 18
VL16 = 20
VONE = 24
VT = 28
VCHK = 36
VTMP = 38
VQ = 48
VS = 112
VP = 176
VNM = 208
VL = 224
VWADDR = 240
VWDMA = 248
def Q(qb, ds): return VQ + (qb*4+ds)*4
def S(par, qb, kt=0): return VS + ((par*4+qb)*2+kt)*4
def P(par, qb): return VP + (par*4+qb)*4
def NM(qb): return VNM + qb*4
def L(par, qb): return VL + (par*4+qb)*4
def QACC(qb, nt): return VS + (qb*8+nt)*4
def O(qb, dt): return (qb*8+dt)*4
def KF(kt, ds): return 128 + (kt*4+ds)*4
def VF(dt): return 160 + dt*4

SK, SV, SW, SH, SO = 16, 20, 24, 28, 32
SOFF, SM0, SCNT, STHR = 36, 37, 38, 39
OFFS = 16.0
THR = 2.0**24

def kread(kt, ds, slot):
    return f'ds_read_b128 {a(KF(kt,ds),4)}, v{VKADDR+ds} offset:{slot*16384 + kt*8192}'
def vread(dt, j2, slot):
    return f'ds_read_b64_tr_b16 {a(VF(dt)+2*j2,2)}, v{VVADDR+dt} offset:{slot*16384 + j2*8192 + 2048}'
def dma(n, o):
    if n < 2:
        return f'buffer_load_dwordx4 v{VKDMA+n}, {s(SK,4)}, s{SOFF} offen offset:{n*1024} {o.kvflags} lds'
    return f'buffer_load_dwordx4 v{VVDMA+n-2}, {s(SV,4)}, s{SOFF} offen offset:{n*1024} {o.kvflags} lds'
def qk_list(par, o, zero=False):
    if o.qkorder == 'chain':
        idx = [(qb, kt, ds) for kt in range(2) for qb in range(4) for ds in range(4)]
    else:
        idx = [(qb, kt, ds) for kt in range(2) for ds in range(4) for qb in range(4)]
    return [f'{MF} {v(S(par,qb,kt),4)}, {a(KF(kt,ds),4)}, {v(Q(qb,ds),4)}, {("0" if zero else v(NM(qb),4)) if ds == 0 else v(S(par,qb,kt),4)}' for qb, kt, ds in idx]
def pv_list(par, o, zero=False):
    idx = [(qb, dt) for dt in range(8) for qb in range(4)] if o.pvorder == 'dt' else [(qb, dt) for qb in range(4) for dt in range(8)]
    return [f'{MF} {a(O(qb,dt),4)}, {a(VF(dt),4)}, {v(P(par,qb),4)}, {"0" if zero else a(O(qb,dt),4)}' for qb, dt in idx]
def l_mfma(par, qb, first=False):
    return f'{MF} {v(L(par,qb),4)}, {v(VONE,4)}, {v(P(par,qb),4)}, {"0" if first else v(L(par^1,qb),4)}'
def exp_op(par, n):
    qb, r = n >> 3, n & 7
    return f'v_exp_f32 v{VT + (n % 8)}, v{S(par,qb)+r}'
def cvt_op(par, p):
    qb, pr = p >> 2, p & 3
    return f'v_cvt_pk_bf16_f32 v{P(par,qb)+pr}, v{VT + (2*p % 8)}, v{VT + ((2*p+1) % 8)}'

def emit_step(A, t, o, tag, zero_o=False, no_pv=False, no_qk=False, sm=True, check=True, first=False,
              vread_on=True, kread_on=True, dma_on=True, vmn=8, bar=True, tail=[], extra={}, dma_alt=None):
    par = t & 1
    slot_cur = (t + 1) % 4; slot_nxt = (t + 2) % 4
    mf = (qk_list(par ^ 1, o) if not no_qk else [None]*32) + (pv_list(par ^ 1, o, zero_o) if not no_pv else [None]*32)
    pat = o.pat
    if dma_alt is not None: dma_on = False
    assert len(pat) == 64
    vq = [vread(dt, j2, slot_cur) for dt in range(8) for j2 in range(2)] if vread_on else []
    kq = [kread(kt, ds, slot_nxt) for kt in range(2) for ds in range(4)] if kread_on else []
    ne = 0; nc = 0; nd = 0; nl = 0
    hist = []
    def since(kind, idx):
        for d, h in enumerate(reversed(hist)):
            if h == (kind, idx): return d
        return None
    def put(ins, key=('x', 0)):
        A(ins); hist.append(key)
    for g in range(64):
        if mf[g] is not None: put(mf[g])
        for x in extra.get(g, []): put(x)
        for ch in pat[g]:
            if ch == 'e':
                if sm: put(exp_op(par, ne), ('e', ne))
                ne += 1
            elif ch == 'c':
                assert 2*nc + 1 < ne, (g, nc, ne)
                if sm:
                    if since('e', 2*nc+1) == 0: put('s_nop 0')
                    put(cvt_op(par, nc), ('c', nc))
                nc += 1
            elif ch == 'v':
                if vq: put(vq.pop(0))
            elif ch == 'k':
                if kq: put(kq.pop(0))
            elif ch == 'L':
                assert nc >= 4*nl + 4, (g, nc, nl)
                if sm:
                    d = since('c', 4*nl+3)
                    if d < 2: put(f's_nop {1-d}')
                    put(l_mfma(par, nl, first), ('L', nl))
                nl += 1
            elif ch == 'B':
                put(f's_waitcnt vmcnt({vmn}) lgkmcnt(0)' if bar else 's_waitcnt lgkmcnt(0)')
                if bar: put('s_barrier')
            elif ch == 'W':
                if kread_on: put('s_waitcnt lgkmcnt(0)')
            elif ch == 'm':
                if dma_on: put(f's_add_u32 m0, s{SM0}, {slot_cur*16384}')
            elif ch == 'D':
                if dma_on: put(dma(nd, o))
                elif dma_alt is not None:
                    for x in dma_alt[nd]: put(x)
                nd += 1
            elif ch == 'o':
                if dma_on: put(f's_add_u32 s{SOFF}, s{SOFF}, 8192')
            elif ch == 'x':
                if sm and check:
                    d = since('L', 2)
                    if d < 8: put(f's_nop {7-d}')
                    put(f'v_max3_f32 v{VCHK}, v{L(par,0)}, v{L(par,1)}, v{L(par,2)}')
            elif ch == 'y':
                if sm and check:
                    d = since('L', 3)
                    if d < 8: put(f's_nop {7-d}')
                    put(f'v_max_f32 v{VCHK}, v{VCHK}, v{L(par,3)}')
            elif ch == 'z':
                if sm and check: put(f'v_cmp_lt_f32 vcc, s{STHR}, v{VCHK}')
            elif ch == 't':
                for x in tail: put(x)
            elif ch == '.': pass
            else: raise ValueError(ch)
    assert ne == 32 and nc == 16 and nl == 4 and nd == 4 and not vq and not kq, (ne, nc, nl, nd, vq, kq)
    if sm and check:
        A(f's_cbranch_vccnz L_rare_{tag}')
        A(f'L_back_{tag}:')

def emit_rowmax(A, par, qb, dst, tmp):
    b = S(par, qb)
    A(f'v_max3_f32 v{dst}, v{b}, v{b+1}, v{b+2}')
    A(f'v_max3_f32 v{dst}, v{dst}, v{b+3}, v{b+4}')
    A(f'v_max3_f32 v{dst}, v{dst}, v{b+5}, v{b+6}')
    A(f'v_max_f32 v{dst}, v{dst}, v{b+7}')
    for k in (16, 32):
        A(f'v_mov_b32 v{tmp}, v{dst}')
        swap_op(A, k, dst, tmp, 'max')

def emit_rare_sub(A, par, name):
    A(f'L_raresub{par}_{name}:')
    A('s_nop 15')
    for qb in range(4):
        d, tm, f = VTMP, VTMP + 1, VTMP + 2
        emit_rowmax(A, par, qb, d, tm)
        A(f'v_ceil_f32 v{d}, v{d}')
        A(f'v_add_f32 v{d}, {f2u(OFFS)}, v{d}')
        A(f'v_max_f32 v{d}, 0, v{d}')
        A(f'v_exp_f32 v{f}, -v{d}')
        for r in range(4): A(f'v_sub_f32 v{NM(qb)+r}, v{NM(qb)+r}, v{d}')
        for r in range(8):
            A(f'v_sub_f32 v{S(par,qb)+r}, v{S(par,qb)+r}, v{d}')
            A(f'v_sub_f32 v{S(par^1,qb)+r}, v{S(par^1,qb)+r}, v{d}')
        for r in range(4): A(f'v_mul_f32 v{L(par^1,qb)+r}, v{L(par^1,qb)+r}, v{f}')
        for r in range(32):
            A(f'v_accvgpr_read_b32 v{tm}, a{O(qb,0)+r}')
            A(f'v_mul_f32 v{tm}, v{tm}, v{f}')
            A(f'v_accvgpr_write_b32 a{O(qb,0)+r}, v{tm}')
        for r in range(8): A(exp_op(par, qb*8+r))
        A('s_nop 0')
        for p in range(4): A(cvt_op(par, qb*4+p))
        A('s_nop 1')
        A(l_mfma(par, qb))
    A('s_nop 7')
    A('s_setpc_b64 s[46:47]')

def gen_attn(A, name, o):
    kernel_begin(A, name)
    A('s_cmp_ge_u32 s2, 256')
    A(f's_cbranch_scc1 L_end_{name}')
    A('s_load_dwordx4 s[4:7], s[0:1], 8')
    A('s_load_dwordx2 s[8:9], s[0:1], 24')
    A('s_load_dwordx2 s[10:11], s[0:1], 104')
    stamp(A, o, 0)
    A(f'''
    s_and_b32 s12, s2, 7
    s_bfe_u32 s14, s2, 0x20003
    s_lshr_b32 s13, s2, 5
    s_lshl_b32 s12, s12, 2
    s_add_u32 s12, s12, s14
    v_lshrrev_b32 v1, 6, v0
    v_and_b32 v0, 63, v0
    v_readfirstlane_b32 s15, v1
    v_lshlrev_b32 v{VL16}, 4, v0
    ''')
    img_dma_chunks(A, 1, VVDMA)
    A(f'''
    s_lshl_b32 s40, s15, 3
    v_add_u32 v1, s40, v1
    v_lshlrev_b32 v2, 13, v1
    v_lshl_add_u32 v{VWDMA}, v{VVDMA}, 4, v2
    v_lshl_add_u32 v{VWDMA+1}, v{VVDMA+1}, 4, v2
    v_add_u32 v{VWDMA+1}, {4*8192-1024}, v{VWDMA+1}
    s_lshl_b32 s48, s15, 11
    s_mul_i32 s49, s13, {o.rotq}
    s_lshl_b32 s50, s14, 2
    s_add_u32 s49, s49, s50
    s_and_b32 s50, s2, {o.rotx}
    s_add_u32 s49, s49, s50
    s_and_b32 s49, s49, 15
    s_mov_b32 s50, s49
    s_lshl_b32 s41, s13, 2
    s_add_u32 s41, s41, s15
    s_waitcnt lgkmcnt(0)
    s_lshl_b32 s40, s12, 8
    s_add_u32 s{SW}, s8, s40
    s_addc_u32 s{SW+1}, s9, 0
    s_lshl_b32 s40, s41, 16
    s_add_u32 s40, s40, {H_OFF}
    s_add_u32 s{SH}, s10, s40
    s_addc_u32 s{SH+1}, s11, 0
    ''')
    srd(A, SW, f's{SW}', f's{SW+1}', 511*8192 + 256)
    srd(A, SH, f's{SH}', f's{SH+1}', 65536)
    vm = VM()
    def late_setup():
        img_read_addr(A, VTMP, VWADDR, 32768)
        A(f'''
        s_lshl_b32 s40, s12, 19
        s_add_u32 s{SK}, s4, s40
        s_addc_u32 s{SK+1}, s5, 0
        s_add_u32 s{SV}, s6, s40
        s_addc_u32 s{SV+1}, s7, 0
        s_sub_u32 s{SV}, s{SV}, {2048+16384}
        s_subb_u32 s{SV+1}, s{SV+1}, 0
        s_lshl_b32 s40, s41, 19
        s_lshl_b32 s42, s12, 14
        s_add_u32 s40, s40, s42
        s_add_u32 s40, s40, {O_OFF}
        s_add_u32 s{SO}, s10, s40
        s_addc_u32 s{SO+1}, s11, 0
        ''')
        srd(A, SK, f's{SK}', f's{SK+1}', 524288)
        srd(A, SV, f's{SV}', f's{SV+1}', 524288 + 2048 + 16384)
        srd(A, SO, f's{SO}', f's{SO+1}', 16384)
        A(f's_lshl_b32 s{SM0}, s15, 12')
        A(f's_mov_b32 s{STHR}, {f2u(THR)}')
        A(f'''
        v_lshlrev_b32 v2, 8, v1
        v_lshl_add_u32 v{VVDMA}, v{VVDMA}, 4, v2
        v_lshl_add_u32 v{VVDMA+1}, v{VVDMA+1}, 4, v2
        v_xor_b32 v3, v1, v0
        v_and_b32 v3, 15, v3
        v_lshl_add_u32 v{VKDMA}, v3, 4, v2
        v_xor_b32 v3, 4, v3
        v_lshl_add_u32 v{VKDMA+1}, v3, 4, v2
        v_bfe_u32 v2, v0, 3, 1
        v_lshlrev_b32 v2, 12, v2
        v_and_b32 v3, 7, v0
        v_lshl_add_u32 v2, v3, 8, v2
        v_lshrrev_b32 v3, 4, v0
        v_xor_b32 v3, v3, v0
        v_and_b32 v3, 15, v3
        ''')
        for ds in range(4):
            A(f'v_xor_b32 v{VKADDR+ds}, {4*ds}, v3')
            A(f'v_lshl_add_u32 v{VKADDR+ds}, v{VKADDR+ds}, 4, v2')
        img_read_addr(A, VTMP, VVADDR, 0, rowform='win')
        for r in range(4): A(f'v_mov_b32 v{VONE+r}, 0x3f803f80')
        A(f'''
        s_lshl_b32 s40, s15, 8
        s_add_u32 s40, s40, s2
        s_cmp_ge_u32 s40, 32
        s_cbranch_scc1 L_nomod_{name}
        s_mov_b32 s52, s10
        ''')
        srd(A, 52, 's52', 's11', MODP_OFF + 65536)
        A(f'v_lshlrev_b32 v2, 2, v0')
        A(f's_lshl_b32 s40, s2, 8')
        for k in range(8):
            A(f's_add_u32 s42, s40, {MODP_OFF + k*8192}')
            A(f'buffer_load_dword v{VT+k}, v2, s[52:55], s42 offen')
        A('s_waitcnt vmcnt(0)')
        for k in range(1, 8): A(f'v_add_f32 v{VT}, v{VT}, v{VT+k}')
        A(f'''
        v_cvt_pk_bf16_f32 v{VT}, v{VT}, v{VT}
        v_and_b32 v{VT}, 0xffff0000, v{VT}
        s_add_u32 s42, s40, 4096
        buffer_store_dword v{VT}, v2, s[52:55], s42 offen
        s_waitcnt vmcnt(0)
        L_nomod_{name}:
        ''')
    hf = lambda c, qb: (c*4+qb)*4
    wf = lambda b, nt: VQ + (b*8+nt)*4
    def kvwin(win, with_v):
        Lx = [(f's_add_u32 m0, s{SM0}, {((win+1)%4)*16384}', None), (f's_mov_b32 s{SOFF}, {(win+1)*8192}', None)]
        return Lx + [(dma(n, o), ('kv', win)) for n in range(4 if with_v else 2)]
    def extra(c):
        if c == 9: return kvwin(-1, False)
        if c == 11: return kvwin(0, False)
        if c == 14: return kvwin(1, True)
        if c == 15: return kvwin(2, True)
        return []
    nn0 = len(A.lines)
    core16(A, vm, 4, QACC, wf, hf, VWADDR, mk_w(VWDMA, 32768, 32*8192, SW, 48, 49, 43, o.wflags), mk_act(4, SH, [VL16]*4, [0,1024,2048,3072], 50, 44, hf),
           D=o.projD, extra=extra, pre_hook=late_setup, order=o.order, o=o)
    if getattr(o, 'pdrop', None):
        import re
        A.lines[nn0:] = [l for l in A.lines[nn0:] if not re.search(o.pdrop, l)]
    stamp(A, o, 1)
    n = vm.need(lambda x: x[0] == 'kv' and x[1] <= 0)
    A(f's_waitcnt vmcnt({n})')
    A('s_barrier')
    for kt in range(2):
        for ds in range(4): A(kread(kt, ds, 0))
    for ds in range(4):
        for qb in range(4):
            b = QACC(qb, 2*ds)
            for r in range(4): A(f'v_cvt_pk_bf16_f32 v{Q(qb,ds)+r}, v{b+2*r}, v{b+2*r+1}')
    for k in (32, 16):
        for ds in range(4):
            for qb in range(4):
                for r in range(2): A(f'v_permlane{k}_swap_b32 v{Q(qb,ds)+r}, v{Q(qb,ds)+2+r}')
    A('s_waitcnt lgkmcnt(0)')
    A('s_barrier')
    mf = qk_list(0, o, zero=True)
    for g in range(32):
        A(mf[g])
        if g == 0:
            A(f's_add_u32 m0, s{SM0}, 0')
            A(f's_mov_b32 s{SOFF}, {4*8192}')
        if g in (2, 4, 6, 8): A(dma(g//2 - 1, o))
        if 16 <= g < 20: A(kread(0, g-16, 1))
    for ds in range(4): A(kread(1, ds, 1))
    A(f's_add_u32 s{SOFF}, s{SOFF}, 8192')
    A('s_nop 3')
    for qb in range(4):
        d, tm = VTMP, VTMP + 1
        emit_rowmax(A, 0, qb, d, tm)
        A(f'v_ceil_f32 v{d}, v{d}')
        A(f'v_add_f32 v{d}, {f2u(OFFS)}, v{d}')
        for r in range(4): A(f'v_sub_f32 v{NM(qb)+r}, 0, v{d}')
        for r in range(8): A(f'v_sub_f32 v{S(0,qb)+r}, v{S(0,qb)+r}, v{d}')
    A('s_waitcnt lgkmcnt(0)')
    A('s_nop 0')
    stamp(A, o, 2)
    rare = []
    emit_step(A, 0, o, 'p0', no_pv=True, check=False, first=True, vread_on=False)
    emit_step(A, 1, o, 'p1', zero_o=True); rare.append((1, 'p1'))
    A(f's_mov_b32 s{SCNT}, 15')
    A(f's_branch L_mid_{name}')
    A('.p2align 6')
    A(f'L_loop_{name}:')
    n0 = len(A.lines)
    for t in range(4):
        if t == 2: A(f'L_mid_{name}:')
        tail = [f's_sub_u32 s{SCNT}, s{SCNT}, 1'] if t == 3 else []
        emit_step(A, t, o, f'l{t}', tail=tail)
        rare.append((t, f'l{t}'))
    if o.drop:
        import re
        A.lines[n0:] = [l for l in A.lines[n0:] if not re.search(o.drop, l)]
    A(f's_cmp_lg_u32 s{SCNT}, 0')
    A(f's_cbranch_scc1 L_loop_{name}')
    emit_step(A, 0, o, 'e0'); rare.append((0, 'e0'))
    emit_step(A, 1, o, 'e1', dma_on=False); rare.append((1, 'e1'))
    emit_step(A, 2, o, 'e2', dma_on=False, vmn=4, kread_on=False); rare.append((2, 'e2'))
    emit_step(A, 3, o, 'e3', no_qk=True, dma_on=False, vmn=0, kread_on=False); rare.append((3, 'e3'))
    emit_step(A, 0, o, 'e4', no_qk=True, sm=False, dma_on=False, kread_on=False, bar=False)
    stamp(A, o, 3)
    for qb in range(4): A(f'v_rcp_f32 v{L(1,qb)}, v{L(1,qb)}')
    A('s_nop 3')
    n = 0
    for m in range(4):
        for qb in range(4):
            b = VS + (n % 8) * 8
            pk = VP + (n % 8) * 4; n += 1
            if qb == 0: A(f's_mov_b32 s44, {m*4096}')
            for r in range(8): A(f'v_accvgpr_read_b32 v{b+r}, a{O(qb,2*m)+r}')
            for r in range(8): A(f'v_mul_f32 v{b+r}, v{b+r}, v{L(1,qb)}')
            for r in range(0, 8, 2): A(f'v_cvt_pk_bf16_f32 v{pk+r//2}, v{b+r}, v{b+r+1}')
            A(f'buffer_store_dwordx4 {v(pk,4)}, v{VL16}, {s(SO,4)}, s44 offen offset:{qb*1024} {o.stflags}')
    if o.timing: A('s_waitcnt vmcnt(0)')
    stamp(A, o, 4)
    dump_stamps(A, o, 5, 's10', 's11', 's15', 1)
    A(f'L_end_{name}:')
    A('s_endpgm')
    A('L_hot_end_attn:')
    for (t, tag) in rare:
        A(f'L_rare_{tag}:')
        A(f's_call_b64 s[46:47], L_raresub{t&1}_{name}')
        A(f's_branch L_back_{tag}')
    emit_rare_sub(A, 0, name)
    emit_rare_sub(A, 1, name)
    return (name, 256, 256, 163840, 512, 96, 256)
```

```python
from c16 import *
import a16
from a16 import (VKADDR, VVADDR, VKDMA, VVDMA, VL16, VONE, VT, VTMP, VQ, VS, VP, Q, S, P, NM, L, QACC, O, KF, VF,
                 SK, SV, SOFF, SM0, SCNT, STHR, OFFS, THR, kread, dma, qk_list, emit_rowmax, emit_rare_sub)
from k16 import code_srd, fragaddr_s

MODP = 0x4000
CTR = 0x20000
C_H, C_P, C_2, C_A, C_O = 0, 8, 16, 24, 40
NCTR = 104
SW, SA, SO, SF, SX = 24, 28, 32, 52, 60
VST = 22

class St:
    def __init__(self, A, o): self.A, self.o, self.n, self.names = A, o, 0, []
    def __call__(self, name):
        if not self.o.timing: return
        A = self.A
        A('s_memtime s[92:93]'); A('s_memrealtime s[94:95]'); A('s_waitcnt lgkmcnt(0)')
        A(f'v_writelane_b32 v{VST}, s94, {self.n}'); A(f'v_writelane_b32 v{VST+1}, s92, {self.n}')
        self.n += 1; self.names.append(name)
    def dump(self, kidx, ws):
        if not self.o.timing: return
        self.A(f'''
        s_lshl_b32 s92, s2, 2
        s_add_u32 s92, s92, s15
        s_lshl_b32 s92, s92, 9
        s_add_u32 s92, s92, {DBG_OFF + kidx*0x100000}
        s_add_u32 s92, s{ws}, s92
        s_addc_u32 s93, s{ws+1}, 0
        s_and_b32 s93, s93, 0xffff
        s_mov_b32 s94, 512
        s_mov_b32 s95, 0x20000
        v_lshlrev_b32 v1, 3, v0
        buffer_store_dwordx2 v[{VST}:{VST+1}], v1, s[92:95], 0 offen
        ''')

def srd_at(A, d, base, off_s, imm, nrec):
    if off_s is not None and imm:
        A(f's_add_u32 s{d}, s{off_s}, {imm}'); A(f's_add_u32 s{d}, s{base}, s{d}')
    elif off_s is not None: A(f's_add_u32 s{d}, s{base}, s{off_s}')
    else: A(f's_add_u32 s{d}, s{base}, {imm}')
    A(f's_addc_u32 s{d+1}, s{base+1}, 0')
    srd(A, d, f's{d}', f's{d+1}', nrec)

def gen_mod(A, name, o):
    kernel_begin(A, name)
    st = St(A, o)
    A(f'''
    s_cmp_ge_u32 s2, 256
    s_cbranch_scc1 L_end_{name}
    s_load_dwordx8 s[4:11], s[0:1], 0
    s_load_dwordx4 s[16:19], s[0:1], 72
    s_load_dwordx2 s[12:13], s[0:1], 104
    v_lshrrev_b32 v1, 6, v0
    v_and_b32 v0, 63, v0
    v_readfirstlane_b32 s15, v1
    v_lshlrev_b32 v5, 4, v0
    s_and_b32 s33, s2, 7
    s_lshr_b32 s34, s2, 3
    ''')
    st('start')
    A(f'''
    s_cmp_lg_u32 s15, 0
    s_cbranch_scc1 L_pf_{name}
    s_cmp_ge_u32 s2, 192
    s_cbranch_scc1 L_zero_{name}
    ''')
    himg_dma_off(A, 6, 3, 6144)
    A(f'''
    v_add_u32 v4, {8*6144-1024}, v3
    v_add_u32 v6, {2*(8*6144-1024)}, v3
    v_add_u32 v7, {3*(8*6144-1024)}, v3
    s_and_b32 s36, s2, 3
    s_lshr_b32 s37, s2, 2
    s_mul_i32 s39, s36, {128*6144}
    s_lshl_b32 s40, s37, 7
    s_add_u32 s39, s39, s40
    s_lshl_b32 s40, s36, 8
    v_lshl_add_u32 v2, v0, 2, s40
    s_waitcnt lgkmcnt(0)
    ''')
    srd(A, 20, 's16', 's17', 1024)
    srd(A, 24, 's18', 's19', 512*6144)
    A('buffer_load_dword v8, v2, s[20:23], 0 offen')
    for ks in range(4):
        A(f's_mov_b32 m0, {ks*4096}')
        if ks: A(f's_add_u32 s39, s39, {32*6144}')
        else: A('s_nop 0')
        for p, r in enumerate((3, 4, 6, 7)):
            A(f'buffer_load_dwordx4 v{r}, s[24:27], s39 offen offset:{p*1024} lds')
    himg_read_addr(A, 13, 16, 0, nmat=1)
    A(f's_mul_i32 s40, s36, 12288')
    A(f's_lshl_b32 s41, s37, 8')
    A(f's_add_u32 s40, s40, s41')
    srd_at(A, 28, 12, 40, MODP, 256)
    A(f'''
    v_lshrrev_b32 v11, 4, v0
    v_lshlrev_b32 v12, 2, v0
    v_lshlrev_b32 v13, 3, v11
    v_lshlrev_b32 v15, 4, v11
    v_and_b32 v14, 15, v0
    s_waitcnt vmcnt(16)
    v_and_b32 v9, 0xffff0000, v8
    v_lshlrev_b32 v8, 16, v8
    v_mul_f32 v24, {f2u(-LOG2E)}, v8
    v_mul_f32 v25, {f2u(-LOG2E)}, v9
    v_exp_f32 v24, v24
    v_exp_f32 v25, v25
    v_cmp_eq_u32 vcc, 0, v14
    v_add_f32 v24, 1.0, v24
    v_add_f32 v25, 1.0, v25
    v_rcp_f32 v26, v24
    v_rcp_f32 v27, v25
    s_nop 0
    v_fma_f32 v24, -v24, v26, 1.0
    v_fma_f32 v25, -v25, v27, 1.0
    v_fmac_f32 v26, v24, v26
    v_fmac_f32 v27, v25, v27
    v_mul_f32 v8, v8, v26
    v_mul_f32 v9, v9, v27
    v_cvt_pk_bf16_f32 v8, v8, v9
    ds_write_b32 v12, v8 offset:16384
    s_waitcnt lgkmcnt(0)
    ''')
    for ks in range(4):
        for j2 in range(2): A(f'ds_read_b64 {v(32+ks*4+2*j2,2)}, v13 offset:{16384 + ks*64 + j2*32}')
    for ks in range(4):
        A(f's_waitcnt vmcnt({12-4*ks})')
        for nt in range(4):
            for j2 in range(2):
                A(f'ds_read_b64_tr_b16 {v(64+(ks*4+nt)*4+2*j2,2)}, v{16+nt} offset:{ks*4096 + j2*2048}')
    for ks in range(4):
        if ks in (0, 3): A(f's_waitcnt lgkmcnt({8 if ks == 0 else 0})')
        for nt in range(4):
            A(f'{MF} {v(48+nt*4,4)}, {v(64+(ks*4+nt)*4,4)}, {v(32+4*ks,4)}, {"0" if ks == 0 else v(48+nt*4,4)}')
    A('s_nop 7')
    A('s_and_saveexec_b64 s[44:45], vcc')
    for nt in range(4): A(f'buffer_store_dwordx4 {v(48+nt*4,4)}, v15, s[28:31], 0 offen offset:{nt*64} sc1')
    A('s_mov_b64 exec, s[44:45]')
    A(f's_branch L_fin_{name}')
    A(f'L_zero_{name}:')
    A('s_cmp_lg_u32 s2, 255')
    A(f's_cbranch_scc1 L_fin_{name}')
    A('s_waitcnt lgkmcnt(0)')
    srd_at(A, 28, 12, None, CTR, NCTR*128)
    A(f'''
    v_lshlrev_b32 v2, 7, v0
    v_mov_b32 v3, 0
    s_movk_i32 s40, 8192
    buffer_store_dword v3, v2, s[28:31], 0 offen sc1
    buffer_store_dword v3, v2, s[28:31], s40 offen sc1
    s_branch L_fin_{name}
    L_pf_{name}:
    s_waitcnt lgkmcnt(0)
    s_cmp_eq_u32 s15, 3
    s_cbranch_scc1 L_pf3_{name}
    ''')
    srd(A, 20, 's10', 's11', 512*8192)
    A(f'''
    s_lshl_b32 s40, s34, 1
    s_add_u32 s40, s40, s15
    s_sub_u32 s40, s40, 1
    s_lshl_b32 s40, s40, 16
    s_lshl_b32 s41, s33, 10
    s_add_u32 s40, s40, s41
    ''')
    for i in range(8):
        A(f'buffer_load_dwordx4 v[8:11], v5, s[20:23], s40 offen')
        if i < 7: A('s_add_u32 s40, s40, 8192')
    A(f's_branch L_fin_{name}')
    A(f'L_pf3_{name}:')
    code_srd(A, 20, 'main_kernel', 'L_hot_end', name)
    A('s_lshl_b32 s40, s34, 11')
    A('buffer_load_dwordx4 v[8:11], v5, s[20:23], s40 offen')
    A('buffer_load_dwordx4 v[8:11], v5, s[20:23], s40 offen offset:1024')
    srd(A, 24, 's4', 's5', 2048*1024)
    A('s_lshl_b32 s40, s2, 13')
    A('s_add_u32 s41, s40, 4096')
    for i in range(8):
        A(f'buffer_load_dwordx4 v[8:11], v5, s[24:27], s{40+(i>>2)} offen offset:{(i&3)*1024}')
    A(f'L_fin_{name}:')
    if o.timing: A('s_waitcnt vmcnt(0)')
    st('end')
    st.dump(0, 12)
    A(f'L_end_{name}:')
    A('s_endpgm')
    return (name, 256, 256, 17408, 128, 100, 128), st.names

lab = [0]
def signal(A, soff, vmn, cond=None):
    lab[0] += 1; n = lab[0]
    A(f's_waitcnt vmcnt({vmn})')
    A('s_barrier')
    A(f's_cmp_lg_u32 s15, {cond if cond else 0}')
    A(f's_cbranch_scc1 L_sig{n}')
    A('s_mov_b64 exec, 1')
    A('v_mov_b32 v1, 1')
    A(f'buffer_atomic_add v1, off, {s(SF,4)}, s{soff} sc1')
    A('s_mov_b64 exec, -1')
    A(f'L_sig{n}:')

def wait_ctr(A, vaddr, target, pre_bar=None):
    lab[0] += 1; n = lab[0]
    A(f'''
    s_cmp_lg_u32 s15, 0
    s_cbranch_scc1 L_wt{n}
    s_mov_b32 s40, 0
    L_poll{n}:
    buffer_load_dword v1, v{vaddr}, {s(SF,4)}, 0 offen sc1
    s_add_u32 s40, s40, 1
    s_waitcnt vmcnt(0)
    v_cmp_gt_u32 vcc, {target}, v1
    s_cbranch_vccz L_wt{n}
    s_cmp_lt_u32 s40, 0x40000
    s_cbranch_scc1 L_poll{n}
    L_wt{n}:
    ''')
    if pre_bar: A(pre_bar)
    A('s_barrier')

class Rebase:
    def __init__(self, regs, base): self.regs, self.base = regs, base
    def fix(self, A, lo, span):
        if lo < self.base or lo + span > self.base + 65536:
            d = lo - self.base
            for r in self.regs:
                A(f'v_add_u32 v{r}, {d}, v{r}' if d > 0 else f'v_subrev_u32 v{r}, {-d}, v{r}')
            self.base = lo
    def off(self, x): return x - self.base

def gemm(A, vm, chunks, NQ, NT, acc, wf, bop, rb, ldsoff, j2off, first, sched, bars, order='t', last_next=None, span=8192):
    def emit(lst):
        for ins, tag in lst:
            A(ins)
            if tag is not None: vm.add(tag)
    nm = NT*NQ
    for k, c in enumerate(chunks):
        n = vm.need(lambda x: (x[0] == 'a' and x[1] <= c) or (x[0] == 'w' and x[1] <= c + 1))
        A(f's_waitcnt vmcnt({n}) lgkmcnt(0)' if n is not None else 's_waitcnt lgkmcnt(0)')
        if bars(c): A('s_barrier')
        nx = chunks[k+1] if k + 1 < len(chunks) else last_next
        rd = []
        if nx is not None:
            rb.fix(A, ldsoff(nx), span)
            rd = wreads(nx, NT, wf, rb, ldsoff, j2off)
        pairs = [(qb, nt) for nt in range(NT) for qb in range(NQ)] if order == 't' else [(qb, nt) for qb in range(NQ) for nt in range(NT)]
        mf = [f'{MF} {v(acc(qb,nt),4)}, {wf(c&1,nt,4)}, {bop(c,qb)}, {"0" if c == first else v(acc(qb,nt),4)}' for qb, nt in pairs]
        units = units_of(sched(c))
        F = {g: [] for g in range(nm)}
        ug = [(i * (nm - 1)) // len(units) + (1 if len(units) < nm//2 else 0) for i in range(len(units))] if units else []
        for g, u in zip(ug, units): F[g] += u
        free = [g for g in range(nm - 4) if g not in ug]
        if 2*len(free) < len(rd): free = list(range(nm - 4))
        per = 1 if len(free) >= len(rd) else 2
        for i, r in enumerate(rd): F[free[i // per]].insert(0, (r, None))
        for g in range(nm):
            A(mf[g]); emit(F[g])

def wreads(c, NT, wf, rb, ldsoff, j2off):
    return [f'ds_read_b64_tr_b16 {wf(c&1,nt,2,2*j2)}, v{rb.regs[nt]} offset:{rb.off(ldsoff(c)) + j2*j2off}' for nt in range(NT) for j2 in range(2)]

def row8_addrs(A, t, vx, vf, vm_):
    A(f'''
    v_and_b32 v{t}, 7, v21
    v_lshrrev_b32 v{t+1}, 5, v21
    v_bfe_u32 v{t+2}, v21, 3, 2
    v_lshlrev_b32 v{vf}, 12, v{t+1}
    v_lshl_add_u32 v{vf}, v{t+2}, 8, v{vf}
    v_lshl_add_u32 v{vf}, v{t}, 4, v{vf}
    v_lshlrev_b32 v{vm_}, 7, v{t+1}
    v_lshl_add_u32 v{vm_}, v{t+2}, 4, v{vm_}
    v_lshrrev_b32 v{vx}, 1, v{vm_}
    v_lshl_add_u32 v{vx}, v{t}, 10, v{vx}
    ''')

def row_stats_write(A, x, r, t, ldsbase):
    A(f'v_add_f32 v{r}, v{x}, v{x+1}')
    A(f'v_mul_f32 v{r+1}, v{x}, v{x}')
    A(f'v_fmac_f32 v{r+1}, v{x+1}, v{x+1}')
    for j in range(2, 16):
        A(f'v_add_f32 v{r}, v{r}, v{x+j}')
        A(f'v_fmac_f32 v{r+1}, v{x+j}, v{x+j}')
    A(f'''
    s_lshl_b32 s40, s15, 3
    v_bfe_u32 v{r+2}, v0, 4, 1
    v_add_f32_dpp v{r}, v{r}, v{r} row_ror:8 row_mask:0xf bank_mask:0xf
    v_add_f32_dpp v{r+1}, v{r+1}, v{r+1} row_ror:8 row_mask:0xf bank_mask:0xf
    v_lshl_add_u32 v{r+2}, v{r+2}, 2, s40
    v_lshl_add_u32 v{r+2}, v{t}, 5, v{r+2}
    v_permlane16_swap_b32 v{r}, v{r+1}
    v_add_f32 v{r}, v{r}, v{r+1}
    v_mov_b32 v{r+1}, v{r}
    s_nop 1
    v_permlane32_swap_b32 v{r}, v{r+1}
    v_add_f32 v{r}, v{r}, v{r+1}
    ds_write_b32 v{r+2}, v{r} offset:{ldsbase}
    ''')

def row_stats_finish(A, b, mean, rstd):
    A(f'''
    v_add_f32 v{b}, v{b}, v{b+2}
    v_add_f32 v{b+1}, v{b+1}, v{b+3}
    v_add_f32 v{b+4}, v{b+4}, v{b+6}
    v_add_f32 v{b+5}, v{b+5}, v{b+7}
    s_mov_b32 s40, {f2u(1/512)}
    v_add_f32 v{b}, v{b}, v{b+4}
    v_add_f32 v{b+1}, v{b+1}, v{b+5}
    v_mul_f32 v{mean}, s40, v{b}
    v_mul_f32 v{b}, v{mean}, v{mean}
    v_fma_f32 v{b}, v{b+1}, s40, -v{b}
    v_max_f32 v{b}, 0, v{b}
    v_add_f32 v{b}, {f2u(1e-5)}, v{b}
    v_rsq_f32 v{rstd}, v{b}
    ''')

def lds_o(c): return 65536 + 8192*c if c < 12 else 32768 + 8192*(c-12)
def lds_q(c): return 32768 + 8192*c

def gen_main(A, name, o):
    kernel_begin(A, name)
    st = St(A, o)
    VWADDR, VWDMA = 240, 248
    A(f'''
    s_cmp_ge_u32 s2, 256
    s_cbranch_scc1 L_end_{name}
    s_load_dwordx8 s[4:11], s[0:1], 0
    s_load_dwordx2 s[72:73], s[0:1], 104
    s_load_dwordx2 s[12:13], s[0:1], 32
    s_load_dwordx4 s[64:67], s[0:1], 48
    s_load_dwordx2 s[68:69], s[0:1], 64
    s_load_dwordx2 s[70:71], s[0:1], 88
    s_and_b32 s58, s2, 7
    s_bfe_u32 s14, s2, 0x20003
    s_lshr_b32 s57, s2, 5
    s_lshl_b32 s56, s58, 2
    s_add_u32 s56, s56, s14
    v_mov_b32 v21, v0
    v_lshrrev_b32 v1, 6, v0
    v_and_b32 v0, 63, v0
    v_readfirstlane_b32 s15, v1
    v_lshlrev_b32 v{VL16}, 4, v0
    v_lshlrev_b32 v54, 4, v21
    ''')
    st('start')
    row8_addrs(A, 48, 51, 52, 53)
    img_dma_chunks(A, 1, VVDMA)
    A(f'''
    s_lshl_b32 s40, s15, 3
    v_add_u32 v37, s40, v1
    v_lshlrev_b32 v2, 13, v37
    v_lshl_add_u32 v{VWDMA}, v{VVDMA}, 4, v2
    v_lshl_add_u32 v{VWDMA+1}, v{VVDMA+1}, 4, v2
    v_add_u32 v{VWDMA+1}, {4*8192-1024}, v{VWDMA+1}
    s_lshl_b32 s48, s15, 11
    s_lshl_b32 s50, s14, 2
    s_add_u32 s49, s57, s50
    s_and_b32 s49, s49, 15
    s_mov_b32 s50, s49
    s_lshl_b32 s59, s57, 2
    s_add_u32 s59, s59, s15
    s_lshl_b32 s40, s2, 13
    s_lshl_b32 s41, s56, 8
    s_waitcnt lgkmcnt(0)
    ''')
    vm = VM()
    def E(lst):
        for ins, tag in lst:
            A(ins)
            if tag is not None: vm.add(tag)
    srd_at(A, SX, 4, 40, 0, 8192)
    srd_at(A, SF, 72, None, 0, CTR + NCTR*128)
    for p in range(2):
        for j in range(2):
            E([(f'buffer_load_dwordx2 {v(56+p*4+j*2,2)}, v51, {s(SX,4)}, 0 offen offset:{p*512+j*32}', ('x', 0))])
    for k in range(4):
        E([(f's_mov_b32 s42, {MODP + k*12288}', None), (f'buffer_load_dwordx4 {v(64+4*k,4)}, v54, {s(SF,4)}, s42 offen', ('m', 0))])
    srd_at(A, SW, 10, 41, 0, 511*8192 + 256)
    iwq = mk_w(VWDMA, 32768, 32*8192, SW, 48, 49, 43, o.wflags)
    nA, nB = o.wqA, o.wqB
    for c in range(nA): E(iwq(c))
    A(f'''
    s_lshr_b32 s74, s2, 3
    s_lshl_b32 s74, s74, 16
    s_bfe_u32 s40, s2, 0x20001
    s_lshl_b32 s40, s40, 10
    s_add_u32 s74, s74, s40
    s_and_b32 s40, s2, 1
    s_lshl_b32 s40, s40, 7
    s_add_u32 s74, s74, s40
    s_mov_b32 s75, 32768
    ''')
    srd_at(A, SO, 72, 74, H_OFF, 65536)
    A(f's_waitcnt vmcnt({vm.need(lambda x: x[0] == "x")})')
    unpack8(A, 56, 80); unpack8(A, 60, 88)
    row_stats_write(A, 80, 96, 48, 4096)
    A(f'''
    s_lshr_b32 s40, s15, 1
    v_cvt_f32_u32 v99, s40
    s_mov_b32 s41, {f2u(QSCALE)}
    s_waitcnt vmcnt({vm.need(lambda x: x[0] == "m")})
    ''')
    for j in range(4):
        A(f'v_add_f32 v{64+j}, v{64+j}, v{68+j}')
        A(f'v_add_f32 v{72+j}, v{72+j}, v{76+j}')
    for j in range(4): A(f'v_add_f32 v{64+j}, v{64+j}, v{72+j}')
    A('v_cvt_pk_bf16_f32 v68, v64, v65'); A('v_cvt_pk_bf16_f32 v69, v66, v67')
    A('v_lshlrev_b32 v64, 16, v68'); A('v_and_b32 v65, 0xffff0000, v68'); A('v_lshlrev_b32 v66, 16, v69'); A('v_and_b32 v67, 0xffff0000, v69')
    for j in range(4): A(f'v_add_f32 v{64+j}, v{64+j}, v99')
    for j in range(4): A(f'v_mul_f32 v{64+j}, s41, v{64+j}')
    A(f'''
    ds_write_b128 v54, v[64:67]
    v_lshlrev_b32 v96, 5, v48
    s_waitcnt lgkmcnt(0)
    s_barrier
    ds_read_b128 v[100:103], v96 offset:4096
    ds_read_b128 v[104:107], v96 offset:4112
    ''')
    for p in range(2):
        for j in range(2):
            A(f'ds_read_b128 {v(112+p*8+j*4,4)}, v53 offset:{p*1024+j*64}')
            A(f'ds_read_b128 {v(128+p*8+j*4,4)}, v53 offset:{2048+p*1024+j*64}')
    A('s_waitcnt lgkmcnt(8)')
    row_stats_finish(A, 100, 108, 109)
    for j in range(16): A(f'v_sub_f32 v{80+j}, v{80+j}, v108')
    for j in range(16): A(f'v_mul_f32 v{80+j}, v{80+j}, v109')
    A('s_waitcnt lgkmcnt(0)')
    for p in range(2):
        for j in range(8): A(f'v_fmac_f32 v{112+p*8+j}, v{80+p*8+j}, v{128+p*8+j}')
        for j in range(4): A(f'v_cvt_pk_bf16_f32 v{56+p*4+j}, v{112+p*8+2*j}, v{113+p*8+2*j}')
        E([(f'buffer_store_dwordx4 {v(56+p*4,4)}, v52, {s(SO,4)}, {"s75" if p else "0"} offen sc1', ('s', 0))])
    st('h_stored')
    for c in range(nA, nB): E(iwq(c))
    A(f's_lshl_b32 s76, s57, 7')
    A(f's_add_u32 s77, s76, {CTR + C_H*128}')
    signal(A, 77, vm.need(lambda x: x[0] == 's'))
    for c in range(nB, 16): E(iwq(c))
    img_read_addr(A, VTMP, VWADDR, 32768)
    A(f's_lshl_b32 s40, s56, 19')
    srd_at(A, SK, 6, 40, 0, 524288)
    A(f'''
    s_add_u32 s{SV}, s8, s40
    s_addc_u32 s{SV+1}, s9, 0
    s_sub_u32 s{SV}, s{SV}, {2048+16384}
    s_subb_u32 s{SV+1}, s{SV+1}, 0
    ''')
    srd(A, SV, f's{SV}', f's{SV+1}', 524288 + 2048 + 16384)
    A(f's_lshl_b32 s40, s59, 16')
    srd_at(A, SA, 72, 40, H_OFF, 65536)
    A(f'''
    s_lshl_b32 s{SM0}, s15, 12
    s_mov_b32 s{STHR}, {f2u(THR)}
    v_lshlrev_b32 v2, 10, v37
    v_lshl_add_u32 v44, v{VVDMA}, 4, v2
    v_lshl_add_u32 v45, v{VVDMA+1}, 4, v2
    v_add_u32 v45, {4*1024-1024}, v45
    v_lshlrev_b32 v2, 8, v37
    v_lshl_add_u32 v{VVDMA}, v{VVDMA}, 4, v2
    v_lshl_add_u32 v{VVDMA+1}, v{VVDMA+1}, 4, v2
    v_xor_b32 v3, v37, v0
    v_and_b32 v3, 15, v3
    v_lshl_add_u32 v{VKDMA}, v3, 4, v2
    v_xor_b32 v3, 4, v3
    v_lshl_add_u32 v{VKDMA+1}, v3, 4, v2
    v_bfe_u32 v2, v0, 3, 1
    v_lshlrev_b32 v2, 12, v2
    v_and_b32 v3, 7, v0
    v_lshl_add_u32 v2, v3, 8, v2
    v_lshrrev_b32 v3, 4, v0
    v_xor_b32 v3, v3, v0
    v_and_b32 v3, 15, v3
    ''')
    for ds in range(4):
        A(f'v_xor_b32 v{VKADDR+ds}, {4*ds}, v3')
        A(f'v_lshl_add_u32 v{VKADDR+ds}, v{VKADDR+ds}, 4, v2')
    img_read_addr(A, VTMP, VVADDR, 0, rowform='win')
    for r in range(4): A(f'v_mov_b32 v{VONE+r}, 0x3f803f80')
    def kvwin(win, with_v):
        Lx = [(f's_add_u32 m0, s{SM0}, {((win+1)%4)*16384}', None), (f's_mov_b32 s{SOFF}, {(win+1)*8192}', None)]
        return Lx + [(dma(n, o), ('kv', win)) for n in range(4 if with_v else 2)]
    E(kvwin(-1, False)); E(kvwin(0, False))
    A(f'v_mov_b32 v2, s77')
    wait_ctr(A, 2, 32, pre_bar=f's_waitcnt vmcnt({vm.need(lambda x: x[0] == "w")})')
    st('h_ready')
    vm.q = [x for x in vm.q if x[0] == 'kv']
    hf = lambda c, qb: (c*4+qb)*4
    iact = mk_act(4, SA, [VL16]*4, [0,1024,2048,3072], 50, 44, hf, 'sc1')
    D0 = o.actD0
    for c in range(D0): E(iact(c))
    nx = [D0]
    def sched_q(c):
        g = []
        for _ in range(2):
            if nx[0] <= c + o.actD and nx[0] < 16: g += iact(nx[0]); nx[0] += 1
        if c == 13: g += kvwin(1, True)
        if c == 14: g += kvwin(2, True)
        return g
    wfv = lambda b, nt, n, off=0: v(VQ + (b*8+nt)*4 + off, n)
    rb = Rebase(list(range(VWADDR, VWADDR+8)), 32768)
    A.ext(wreads(0, 8, wfv, rb, lds_q, 4096))
    gemm(A, vm, list(range(16)), 4, 8, QACC, wfv, lambda c, qb: a(hf(c,qb),4), rb, lds_q, 4096, 0, sched_q, lambda c: c == 12, o.order)
    st('qproj')
    for kt in range(2):
        for ds in range(4): A(kread(kt, ds, 0))
    for ds in range(4):
        for qb in range(4):
            b = QACC(qb, 2*ds)
            for r in range(4): A(f'v_cvt_pk_bf16_f32 v{Q(qb,ds)+r}, v{b+2*r}, v{b+2*r+1}')
    for k in (32, 16):
        for ds in range(4):
            for qb in range(4):
                for r in range(2): A(f'v_permlane{k}_swap_b32 v{Q(qb,ds)+r}, v{Q(qb,ds)+2+r}')
    A('s_waitcnt lgkmcnt(0)')
    A('s_barrier')
    mf = qk_list(0, o, zero=True)
    for g in range(32):
        A(mf[g])
        if g == 0:
            A(f's_add_u32 m0, s{SM0}, 0')
            A(f's_mov_b32 s{SOFF}, {4*8192}')
        if g in (2, 4, 6, 8): A(dma(g//2 - 1, o))
        if 16 <= g < 20: A(kread(0, g-16, 1))
    for ds in range(4): A(kread(1, ds, 1))
    A(f's_add_u32 s{SOFF}, s{SOFF}, 8192')
    A(f'''
    s_lshl_b32 s40, s58, 19
    s_lshl_b32 s41, s14, 8
    s_add_u32 s40, s40, s41
    ''')
    srd_at(A, SW, 12, 40, 0, 511*1024 + 256)
    A(f'''
    s_lshl_b32 s49, s14, 2
    s_add_u32 s51, s48, 65536
    s_lshr_b32 s78, s2, 3
    s_mul_i32 s79, s58, 31
    s_add_u32 s79, s79, s78
    s_mul_i32 s40, s58, {31*745}
    s_lshr_b32 s40, s40, 13
    s_lshl_b32 s40, s40, 7
    s_mul_i32 s41, s78, {16*2752}
    s_add_u32 s40, s40, s41
    s_and_b32 s41, s58, 1
    s_lshl_b32 s41, s41, 9
    s_mul_i32 s42, s78, {43*1024}
    s_add_u32 s41, s41, s42
    s_and_b32 s42, s15, 1
    s_mul_i32 s43, s42, {22*1024}
    s_add_u32 s41, s41, s43
    s_cmp_eq_u32 s15, 1
    s_cselect_b32 s{SX}, s66, s64
    s_cselect_b32 s{SX+1}, s67, s65
    s_cmp_ge_u32 s15, 2
    s_cselect_b32 s{SX}, s68, s{SX}
    s_cselect_b32 s{SX+1}, s69, s{SX+1}
    s_cselect_b32 s80, s41, s40
    s_movk_i32 s40, 2752
    s_cselect_b32 s40, 1024, s40
    s_lshl_b32 s81, s40, 1
    v_lshrrev_b32 v2, 5, v0
    v_and_b32 v3, 31, v0
    v_mul_u32_u24 v2, s40, v2
    v_lshl_add_u32 v46, v3, 4, v2
    ''')
    srd(A, SX, f's{SX}', f's{SX+1}', 1376*1024)
    for qb in range(4):
        d, tm = VTMP, VTMP + 1
        emit_rowmax(A, 0, qb, d, tm)
        A(f'v_ceil_f32 v{d}, v{d}')
        A(f'v_add_f32 v{d}, {f2u(OFFS)}, v{d}')
        for r in range(4): A(f'v_sub_f32 v{NM(qb)+r}, 0, v{d}')
        for r in range(8): A(f'v_sub_f32 v{S(0,qb)+r}, v{S(0,qb)+r}, v{d}')
    A('s_waitcnt lgkmcnt(0)')
    A('s_nop 0')
    st('loop_start')
    rare = []
    es = a16.emit_step
    def wo_dma(j): return f'buffer_load_dwordx4 v{44+j}, {s(SW,4)}, s43 offen offset:{1024*j} {o.wflags} lds'
    x_wo = {o.xg[0]: ['s_mov_b32 m0, s51', 's_lshl_b32 s43, s49, 15'], o.xg[1]: [wo_dma(0)], o.xg[2]: [wo_dma(1)],
            o.xg[3]: [f's_cmp_gt_u32 s{SCNT}, 4', 's_cselect_b32 s42, 1, 0'], o.xg[4]: ['s_add_u32 s49, s49, s42', 's_lshl_b32 s42, s42, 13'],
            o.xg[5]: ['s_and_b32 s49, s49, 15', 's_add_u32 s51, s51, s42']}
    x_pf = {o.xg[1]: [f'buffer_load_dwordx4 a[192:195], v46, {s(SX,4)}, s80 offen'], o.xg[3]: ['s_add_u32 s80, s80, s81']}
    es(A, 0, o, 'p0', no_pv=True, check=False, first=True, vread_on=False)
    es(A, 1, o, 'p1', zero_o=True); rare.append((1, 'p1'))
    A(f's_mov_b32 s{SCNT}, 15')
    A(f's_branch L_mid_{name}')
    A('.p2align 6')
    A(f'L_loop_{name}:')
    n0 = len(A.lines)
    vmn = {0: 11, 1: 9, 2: 10, 3: 10}
    for t in range(4):
        if t == 2: A(f'L_mid_{name}:')
        tail = [f's_sub_u32 s{SCNT}, s{SCNT}, 1'] if t == 3 else []
        es(A, t, o, f'l{t}', tail=tail, vmn=vmn[t], extra={2: x_wo, 0: x_pf}.get(t, {}))
        rare.append((t, f'l{t}'))
    if o.drop:
        import re
        A.lines[n0:] = [l for l in A.lines[n0:] if not re.search(o.drop, l)]
    A(f's_cmp_lg_u32 s{SCNT}, 0')
    A(f's_cbranch_scc1 L_loop_{name}')
    def wo_tail(c0):
        seq = []
        for c in (c0, c0+1):
            seq.append(['s_add_u32 s49, s49, 1', 's_and_b32 s49, s49, 15', f's_add_u32 m0, s48, {lds_o(c)}', 's_lshl_b32 s43, s49, 15', wo_dma(0)])
            seq.append([wo_dma(1)])
        return seq
    es(A, 0, o, 'e0', vmn=8); rare.append((0, 'e0'))
    es(A, 1, o, 'e1', dma_alt=wo_tail(12)); rare.append((1, 'e1'))
    es(A, 2, o, 'e2', dma_alt=wo_tail(14), kread_on=False); rare.append((2, 'e2'))
    es(A, 3, o, 'e3', no_qk=True, dma_on=False, kread_on=False); rare.append((3, 'e3'))
    es(A, 0, o, 'e4', no_qk=True, sm=False, dma_on=False, kread_on=False, bar=False)
    st('loop_end')
    vm = VM()
    for qb in range(4): A(f'v_rcp_f32 v{VT+qb}, v{L(1,qb)}')
    A(f'''
    s_lshl_b32 s40, s59, 19
    s_lshl_b32 s41, s56, 14
    s_add_u32 s41, s40, s41
    ''')
    srd_at(A, SO, 72, 41, O_OFF, 16384)
    A(f's_lshl_b32 s41, s58, 16')
    A(f's_add_u32 s41, s40, s41')
    srd_at(A, SA, 72, 41, O_OFF, 65536)
    img_read_addr(A, VTMP, VWADDR, 65536)
    rb = Rebase(list(range(VWADDR, VWADDR+8)), 65536)
    wfa = lambda b, nt, n, off=0: a(192 + (b*8+nt)*4 + off, n)
    OWN = lambda m, qb: VQ + (m*4+qb)*4
    A('s_waitcnt vmcnt(0)')
    A('s_barrier')
    A.ext(wreads(0, 8, wfa, rb, lds_o, 4096))
    n = 0
    for m in range(4):
        for qb in range(4):
            b = VS + (n % 8) * 8; n += 1
            if qb == 0: A(f's_mov_b32 s44, {m*4096}')
            for r in range(8): A(f'v_accvgpr_read_b32 v{b+r}, a{O(qb,2*m)+r}')
            for r in range(8): A(f'v_mul_f32 v{b+r}, v{b+r}, v{VT+qb}')
            for r in range(0, 8, 2): A(f'v_cvt_pk_bf16_f32 v{OWN(m,qb)+r//2}, v{b+r}, v{b+r+1}')
            E([(f'buffer_store_dwordx4 {v(OWN(m,qb),4)}, v{VL16}, {s(SO,4)}, s44 offen offset:{qb*1024} sc1', ('s', 0))])
    st('o_stored')
    sf = lambda c, qb: ((c-4)*4+qb)*4
    bop = lambda c, qb: v(OWN(c,qb),4) if c < 4 else a(sf(c,qb),4)
    none = lambda c: []
    k1 = o.osig
    gemm(A, vm, list(range(k1)), 4, 8, QACC, wfa, bop, rb, lds_o, 4096, 0, none, lambda c: False, o.order, last_next=k1)
    A(f'''
    s_lshl_b32 s40, s57, 3
    s_add_u32 s40, s40, s58
    s_lshl_b32 s40, s40, 7
    s_add_u32 s77, s40, {CTR + C_O*128}
    ''')
    signal(A, 77, 0)
    if k1 < 4: gemm(A, vm, list(range(k1, 4)), 4, 8, QACC, wfa, bop, rb, lds_o, 4096, 0, none, lambda c: False, o.order, last_next=4)
    A(f'''
    s_cmp_lt_u32 s78, 31
    s_cselect_b32 s82, 0, 5
    s_cmp_lt_u32 s79, 242
    s_cselect_b32 s82, s82, 5
    s_min_u32 s79, s79, 241
    s_mul_i32 s83, s79, 745
    s_lshr_b32 s83, s83, 13
    s_mul_i32 s84, s83, 11
    s_sub_u32 s84, s79, s84
    s_cmp_ge_u32 s15, 2
    s_cselect_b32 s40, s66, s64
    s_cselect_b32 s41, s67, s65
    s_lshl_b32 s42, s83, 7
    s_add_u32 s{SW}, s40, s42
    s_addc_u32 s{SW+1}, s41, 0
    s_sub_u32 s{SW+2}, {512*2752}, s42
    s_and_b32 s{SW+1}, s{SW+1}, 0xffff
    s_mov_b32 s{SW+3}, 0x20000
    s_mul_i32 s85, s79, 3
    s_and_b32 s85, s85, 15
    s_mov_b32 s49, s85
    s_lshl_b32 s50, s14, 2
    s_add_u32 s50, s50, 4
    s_and_b32 s50, s50, 15
    ''')
    himg_dma_off(A, VTMP, 44, 2752)
    A(f'''
    s_and_b32 s40, s15, 1
    s_mul_i32 s40, s40, {16*2752}
    v_add_u32 v44, s40, v44
    v_add_u32 v45, {8*2752-1024}, v44
    v_mov_b32 v2, s77
    ''')
    wait_ctr(A, 2, 4)
    st('o_ready')
    vm = VM()
    iact = mk_act(4, SA, [VL16]*4, [0,1024,2048,3072], 50, 44, sf, 'sc1')
    def iwg(c):
        return [(f's_add_u32 m0, s48, {lds_o(c)}', None), (f's_mul_i32 s43, s49, {32*2752}', None),
                (f'buffer_load_dwordx4 v44, {s(SW,4)}, s43 offen {o.wflags} lds', ('g', c)),
                ('s_add_u32 s49, s49, 1', None), ('s_and_b32 s49, s49, 15', None),
                (f'buffer_load_dwordx4 v45, {s(SW,4)}, s43 offen offset:1024 {o.wflags} lds', ('g', c))]
    for c in range(4, 4 + D0): E(iact(c))
    nx = [4 + D0]; ng = [0]
    def sched_o(c):
        g = []
        for _ in range(2):
            if nx[0] < 16: g += iact(nx[0]); nx[0] += 1
        if not g:
            for _ in range(3):
                if ng[0] <= c: g += iwg(ng[0]); ng[0] += 1
        return g
    gemm(A, vm, list(range(4, 16)), 4, 8, QACC, wfa, bop, rb, lds_o, 4096, 0, sched_o, lambda c: nx[0] >= 16, o.order)
    assert ng[0] == 16, ng
    st('oproj')
    A(f'''
    s_lshl_b32 s40, s58, 21
    s_lshl_b32 s41, s59, 16
    s_add_u32 s40, s40, s41
    s_lshl_b32 s41, s14, 14
    s_add_u32 s40, s40, s41
    ''')
    srd_at(A, SO, 72, 40, PART_OFF, 16384)
    n = 0
    for m in range(4):
        for qb in range(4):
            pk = VQ + n*4; n += 1
            b = QACC(qb, 2*m)
            if qb == 0: A(f's_mov_b32 s44, {m*4096}')
            for r in range(0, 8, 2): A(f'v_cvt_pk_bf16_f32 v{pk+r//2}, v{b+r}, v{b+r+1}')
            E([(f'buffer_store_dwordx4 {v(pk,4)}, v{VL16}, {s(SO,4)}, s44 offen offset:{qb*1024} sc1', ('s', 0))])
    row8_addrs(A, 4, 7, 8, 9)
    A('v_lshlrev_b32 v10, 5, v21')
    A('s_lshl_b32 s40, s2, 13')
    srd_at(A, SX, 4, 40, 0, 8192)
    for k in range(4):
        E([(f's_mov_b32 s42, {MODP + k*12288 + 4096}', None),
           (f'buffer_load_dwordx4 {v(112+8*k,4)}, v10, {s(SF,4)}, s42 offen', ('m', 0)),
           (f'buffer_load_dwordx4 {v(116+8*k,4)}, v10, {s(SF,4)}, s42 offen offset:16', ('m', 0))])
    for p in range(2):
        for j in range(2):
            E([(f'buffer_load_dwordx2 {v(12+p*4+j*2,2)}, v7, {s(SX,4)}, 0 offen offset:{p*512+j*32}', ('x', 0))])
    A(f's_add_u32 s77, s76, {CTR + C_P*128}')
    signal(A, 77, vm.need(lambda x: x[0] == 's'))
    st('p_signal')
    srd_at(A, SA, 72, 74, PART_OFF, (14 << 20) + 65536)
    srd_at(A, SX, 72, 40, X1_OFF, 8192)
    srd_at(A, SO, 72, 74, H2_OFF, 65536)
    A('s_waitcnt vmcnt(4)')
    for j in range(8):
        A(f'v_add_f32 v{112+j}, v{112+j}, v{120+j}')
        A(f'v_add_f32 v{128+j}, v{128+j}, v{136+j}')
    for j in range(8): A(f'v_add_f32 v{112+j}, v{112+j}, v{128+j}')
    for j in range(4): A(f'v_cvt_pk_bf16_f32 v{120+j}, v{112+2*j}, v{113+2*j}')
    unpack8(A, 120, 112)
    A(f'''
    s_cmp_eq_u32 s15, 2
    s_cselect_b32 s40, 1.0, 0
    ''')
    for j in range(8): A(f'v_add_f32 v{112+j}, s40, v{112+j}')
    A(f'''
    ds_write_b128 v10, v[112:115]
    ds_write_b128 v10, v[116:119] offset:16
    v_mov_b32 v2, s77
    s_waitcnt vmcnt(0)
    ''')
    unpack8(A, 12, 176); unpack8(A, 16, 184)
    wait_ctr(A, 2, 32, pre_bar='s_waitcnt lgkmcnt(0)')
    st('p_ready')
    for sp in range(8):
        A(f's_mov_b32 s42, {sp << 21}')
        A(f's_mov_b32 s43, {(sp << 21) + 32768}')
        for p in range(2):
            A(f'buffer_load_dwordx4 {v(48+(sp*2+p)*4,4)}, v8, {s(SA,4)}, s{42+p} offen sc1')
    for vec, base in ((0, 192), (2, 208), (1, 224)):
        for p in range(2):
            for j in range(2):
                A(f'ds_read_b128 {v(base+p*8+j*4,4)}, v9 offset:{vec*2048 + p*1024 + j*64}')
    A(f'''
    s_bfe_u32 s86, s2, 0x20001
    s_lshl_b32 s86, s86, 3
    s_add_u32 s86, s86, s57
    s_and_b32 s87, s2, 1
    s_lshl_b32 s87, s87, 2
    s_add_u32 s87, s87, s14
    s_lshl_b32 s40, s87, 8
    v_lshl_add_u32 v11, v4, 5, s40
    ds_read_b128 v[28:31], v11 offset:6144
    ds_read_b128 v[32:35], v11 offset:6160
    ''')
    for sp in range(8):
        for p in range(2):
            A(f's_waitcnt vmcnt({15 - sp*2 - p})')
            if sp == 0: unpack8(A, 48+p*4, 112+p*8)
            else:
                unpack8(A, 48+(sp*2+p)*4, 128)
                for j in range(8): A(f'v_add_f32 v{112+p*8+j}, v{112+p*8+j}, v{128+j}')
    A('s_waitcnt lgkmcnt(0)')
    for j in range(16): A(f'v_fmac_f32 v{176+j}, v{192+j}, v{112+j}')
    for j in range(8): A(f'v_cvt_pk_bf16_f32 v{12+j}, v{176+2*j}, v{177+2*j}')
    unpack8(A, 12, 176); unpack8(A, 16, 184)
    row_stats_write(A, 176, 136, 4, 8192)
    vm = VM()
    for p in range(2):
        for j in range(2):
            E([(f'buffer_store_dwordx2 {v(12+p*4+j*2,2)}, v7, {s(SX,4)}, 0 offen offset:{p*512+j*32} sc1', ('s', 0))])
    A(f'''
    v_lshlrev_b32 v136, 5, v4
    s_waitcnt lgkmcnt(0)
    s_barrier
    ds_read_b128 v[140:143], v136 offset:8192
    ds_read_b128 v[144:147], v136 offset:8208
    s_waitcnt lgkmcnt(0)
    ''')
    row_stats_finish(A, 140, 148, 149)
    for j in range(16): A(f'v_sub_f32 v{176+j}, v{176+j}, v148')
    for j in range(16): A(f'v_mul_f32 v{176+j}, v{176+j}, v149')
    for p in range(2):
        for j in range(8): A(f'v_fmac_f32 v{224+p*8+j}, v{176+p*8+j}, v{208+p*8+j}')
        for j in range(4): A(f'v_cvt_pk_bf16_f32 v{112+p*4+j}, v{224+p*8+2*j}, v{225+p*8+2*j}')
        E([(f'buffer_store_dwordx4 {v(112+p*4,4)}, v8, {s(SO,4)}, {"s75" if p else "0"} offen sc1', ('s', 0))])
    st('h2_stored')
    A(f's_add_u32 s77, s76, {CTR + C_2*128}')
    himg_read_addr(A, VTMP, VWADDR, 65536)
    rb = Rebase(list(range(VWADDR, VWADDR+8)), 65536)
    himg_dma_off(A, VTMP, 44, 1024)
    A(f'''
    v_add_u32 v45, {8192-1024}, v44
    v_add_u32 v46, {2*(8192-1024)}, v44
    v_add_u32 v47, {3*(8192-1024)}, v44
    s_lshl_b32 s42, s87, 7
    s_add_u32 s{SW}, s68, s42
    s_addc_u32 s{SW+1}, s69, 0
    s_sub_u32 s{SW+2}, {1376*1024}, s42
    s_and_b32 s{SW+1}, s{SW+1}, 0xffff
    s_mov_b32 s{SW+3}, 0x20000
    s_mul_i32 s88, s15, {11*32*1024}
    s_lshl_b32 s89, s84, 2
    s_add_u32 s89, s89, s15
    s_mul_i32 s89, s89, 3
    ''')
    signal(A, 77, 0)
    def lds_d(k): return lds_o(2*k) if k < 8 else ((k-8)*16384 if k < 10 else lds_o(0))
    def iwd(k):
        L_ = [(f's_add_u32 m0, s{SM0}, {lds_d(k)}', None), (f's_add_u32 s43, s88, {k*32*1024}', None)]
        return L_ + [(f'buffer_load_dwordx4 v{44+p}, {s(SW,4)}, s43 offen offset:{p*1024} {o.wflags} lds', ('d', k)) for p in range(4)]
    vm = VM()
    E(iwd(8)); E(iwd(9))
    wfg = lambda b, nt, n, off=0: v(48 + (b*8+nt)*4 + off, n)
    A.ext(wreads(0, 8, wfg, rb, lds_o, 2048))
    for qb in range(3):
        A(f's_add_u32 s42, s89, {qb}')
        fragaddr_s(A, 40, 42, 16, 43)
        A(f'v_add_u32 v{4+qb}, s40, v{VL16}')
        A(f'''
        s_lshr_b32 s40, s42, 2
        s_mul_i32 s40, s40, {43*4096}
        s_add_u32 s40, s40, s43
        s_lshl_b32 s42, s83, 13
        s_add_u32 s40, s40, s42
        v_add_u32 v{8+qb}, s40, v{VL16}
        ''')
    srd_at(A, SA, 72, None, H2_OFF, 2 << 20)
    srd_at(A, SO, 72, None, A_OFF, 128*43*1024)
    A(f'''
    s_cmp_eq_u32 s82, 0
    s_cselect_b32 s{SO+2}, s{SO+2}, 0
    s_mov_b32 s50, s85
    s_mul_i32 s40, s84, 3
    s_add_u32 s41, s40, 2
    s_lshr_b32 s40, s40, 2
    s_lshr_b32 s41, s41, 2
    s_min_u32 s41, s41, 7
    s_lshl_b32 s40, s40, 7
    s_lshl_b32 s41, s41, 7
    s_add_u32 s40, s40, {CTR + C_2*128}
    s_add_u32 s41, s41, {CTR + C_2*128}
    v_mov_b32 v2, s40
    v_writelane_b32 v2, s41, 1
    ''')
    wait_ctr(A, 2, 32)
    st('h2_ready')
    gf = lambda c, qb: (c*3+qb)*4
    gacc = lambda qb, nt: 112 + (qb*8+nt)*4
    iact = mk_act(3, SA, [4,5,6], [0,0,0], 50, 44, gf, 'sc1')
    for c in range(D0): E(iact(c))
    nx = [D0]; nd = [0]
    def sched_g(c):
        g = []
        for _ in range(2):
            if nx[0] < 16: g += iact(nx[0]); nx[0] += 1
        if not g:
            for _ in range(2):
                if nd[0] < 8 and 2*nd[0] + 1 <= c: g += iwd(nd[0]); nd[0] += 1
        return g
    gemm(A, vm, list(range(16)), 3, 8, gacc, wfg, lambda c, qb: a(gf(c,qb),4), rb, lds_o, 2048, 0, sched_g, lambda c: nx[0] >= 16, o.order)
    assert nd[0] == 8
    st('glu')
    A('s_movk_i32 s44, 4096')
    A('s_nop 6')
    for m in range(2):
        if m == 1:
            A('s_cmp_eq_u32 s83, 21')
            A(f's_cbranch_scc1 L_skipa_{name}')
        for qb in range(3):
            b = gacc(qb, 2*m); pk = 48 + (m*3+qb)*4
            for r in range(8): A(f'v_mul_f32 v{b+r}, v{b+r}, v{b+16+r}')
            for r in range(0, 8, 2): A(f'v_cvt_pk_bf16_f32 v{pk+r//2}, v{b+r}, v{b+r+1}')
            A(f'buffer_store_dwordx4 {v(pk,4)}, v{8+qb}, {s(SO,4)}, {"s44" if m else "0"} offen sc1')
    A(f'L_skipa_{name}:')
    A(f'''
    s_lshl_b32 s77, s84, 7
    s_add_u32 s77, s77, {CTR + C_A*128}
    s_add_u32 s40, s{SM0}, 65536
    ''')
    himg_read_addr(A, VTMP, VWADDR, 's40', nmat=1)
    rb = Rebase(list(range(VWADDR, VWADDR+4)), 65536)
    signal(A, 77, 0, cond='s82')
    st('a_signal')
    wfd = lambda b, nt, n, off=0: v(80 + (b*4+nt)*4 + off, n)
    A.ext(wreads(0, 4, wfd, rb, lds_d, 2048))
    A(f'''
    s_mul_i32 s40, s86, {43*4096}
    s_mul_i32 s41, s15, {11*4096}
    s_add_u32 s40, s40, s41
    ''')
    srd_at(A, SA, 72, 40, A_OFF, 11*4096)
    A(f'''
    s_lshl_b32 s40, s86, 16
    s_lshl_b32 s41, s87, 7
    s_add_u32 s40, s40, s41
    ''')
    srd_at(A, SX, 72, 40, X1_OFF, 63*1024 + 128)
    srd_at(A, SO, 70, 40, 0, 63*1024 + 128)
    A(f'''
    v_lshrrev_b32 v2, 3, v21
    v_and_b32 v3, 7, v21
    v_lshlrev_b32 v14, 10, v2
    v_lshl_add_u32 v14, v3, 4, v14
    v_mul_u32_u24 v16, 272, v2
    v_lshl_add_u32 v16, v3, 5, v16
    v_and_b32 v2, 15, v0
    v_lshrrev_b32 v3, 4, v0
    v_mul_u32_u24 v17, 272, v2
    v_lshl_add_u32 v17, v3, 4, v17
    s_mul_i32 s40, s15, 17408
    v_add_u32 v17, s40, v17
    s_mul_i32 s40, s86, 43
    s_lshr_b32 s40, s40, 7
    s_lshl_b32 s40, s40, 7
    s_add_u32 s40, s40, {CTR + C_A*128}
    v_mov_b32 v2, s40
    ''')
    wait_ctr(A, 2, 22)
    st('a_ready')
    vm = VM()
    df = lambda c, qb: (c*4+qb)*4
    dacc = lambda qb, nt: 112 + (qb*4+nt)*4
    def iad(c):
        return [(f's_mov_b32 s44, {c*4096}', None)] + [(f'buffer_load_dwordx4 {a(df(c,qb),4)}, v{VL16}, {s(SA,4)}, s44 offen offset:{qb*1024} sc1', ('a', c)) for qb in range(4)]
    for c in range(D0): E(iad(c))
    nx = [D0]
    def sched_d(c):
        g = []
        for _ in range(2):
            if nx[0] < 11: g += iad(nx[0]); nx[0] += 1
        if c == o.dlate:
            g += [(i_, ('w', 10) if t_ else None) for i_, t_ in iwd(10)]
            g += [(f'buffer_load_dwordx4 v[4:7], v14, {s(SX,4)}, 0 offen sc1', ('x', 0)), (f'buffer_load_dwordx4 v[8:11], v14, {s(SX,4)}, s75 offen sc1', ('x', 0))]
        return g
    gemm(A, vm, list(range(10)), 4, 4, dacc, wfd, lambda c, qb: a(df(c,qb),4), rb, lds_d, 2048, 0, sched_d, lambda c: False, o.order, last_next=10, span=16384)
    A('s_cmp_eq_u32 s15, 3')
    A(f's_cbranch_scc1 L_skipk_{name}')
    gemm(A, vm, [10], 4, 4, dacc, wfd, lambda c, qb: a(df(c,qb),4), rb, lds_d, 2048, 0, none, lambda c: False, o.order)
    A(f'L_skipk_{name}:')
    st('down')
    A('s_waitcnt vmcnt(0) lgkmcnt(0)')
    A('s_barrier')
    A('s_nop 5')
    for qb in range(4):
        for nt in range(4):
            A(f'ds_write_b128 v17, {v(dacc(qb,nt),4)} offset:{qb*16*272 + nt*64}')
    A('s_waitcnt lgkmcnt(0)')
    A('s_barrier')
    for p in range(2):
        for w in range(4):
            base = 112 + (p*4+w)*8
            off = w*17408 + p*32*272
            A(f'ds_read_b128 {v(base,4)}, v16 offset:{off}')
            A(f'ds_read_b128 {v(base+4,4)}, v16 offset:{off+16}')
    for p in range(2):
        unpack8(A, 4+4*p, 48)
        A(f's_waitcnt lgkmcnt({8 if p == 0 else 0})')
        b = 112 + p*32
        for j in range(8):
            A(f'v_add_f32 v{b+j}, v{b+j}, v{b+8+j}')
            A(f'v_add_f32 v{b+16+j}, v{b+16+j}, v{b+24+j}')
        for j in range(8): A(f'v_add_f32 v{b+j}, v{b+j}, v{b+16+j}')
        for j in range(8): A(f'v_fmac_f32 v{48+j}, v{28+j}, v{b+j}')
        for i in range(4): A(f'v_cvt_pk_bf16_f32 v{56+4*p+i}, v{48+2*i}, v{49+2*i}')
        A(f'buffer_store_dwordx4 {v(56+4*p,4)}, v14, {s(SO,4)}, {"s75" if p else "0"} offen {o.outflags}')
    if o.timing: A('s_waitcnt vmcnt(0)')
    st('end')
    st.dump(1, 72)
    A(f'L_end_{name}:')
    A('s_endpgm')
    A('L_hot_end:')
    for (t, tag) in rare:
        A(f'L_rare_{tag}:')
        A(f's_call_b64 s[46:47], L_raresub{t&1}_{name}')
        A(f's_branch L_back_{tag}')
    emit_rare_sub(A, 0, name)
    emit_rare_sub(A, 1, name)
    return (name, 256, 256, 163840, 512, 100, 256), st.names
```

```python
import sys, json
from c16 import *
import fz
from gen16 import default_pat
class Opt:
    timing = False
    drop = None
    wflags = ''; kvflags = 'nt'; outflags = 'sc1'
    order = 't'; qkorder = 'chain'; pvorder = 'dt'
    pat = None
    wqA = 3; wqB = 7
    actD0 = 2; actD = 4
    osig = 2; dlate = 4
    xg = (20, 22, 25, 23, 24, 26)
def build(o):
    if o.pat is None: o.pat = default_pat()
    A = Asm()
    A('.amdgcn_target "amdgcn-amd-amdhsa--gfx950"')
    A('.text')
    ks = []; names = {}
    for n, g in [('mod_kernel', fz.gen_mod), ('main_kernel', fz.gen_main)]:
        k, nm = g(A, n, o); ks.append(k); names[n] = nm
    txt = HEADER
    if o.timing: txt += '; STAMPS ' + json.dumps(names) + '\n'
    for (n, grid, blk, lds, nv, ns, acc) in ks:
        txt += f'; @launch kernel={n} grid=({grid},1,1) block=({blk},1,1) lds={lds}\n'
    txt += A.text() + '.section .rodata,"a"\n'
    for (n, grid, blk, lds, nv, ns, acc) in ks:
        txt += '.p2align 6\n' + kernel_desc(n, nv, ns, acc)
    return txt
if __name__ == '__main__':
    o = Opt()
    for kv in sys.argv[2:]:
        k, val = kv.split('=', 1)
        setattr(o, k, eval(val))
    open(sys.argv[1], 'w').write(build(o))
```

```python
import sys
from common import *
def add_reporter(src, dst, A_, B_, mult=1):
    t = open(src).read()
    lines = t.split('\n')
    idx = [i for i, l in enumerate(lines) if l.startswith('; @launch')]
    lines.insert(idx[-1]+1, '; @launch kernel=rep_kernel grid=(1,1,1) block=(64,1,1) lds=0')
    t = '\n'.join(lines)
    off = lambda x: DBG_OFF + x[0]*0x100000 + x[1]*128 + x[2]*16 + 8
    code = f'''.globl rep_kernel
.p2align 8
.type rep_kernel,@function
rep_kernel:
    s_cmp_ge_u32 s2, 1
    s_cbranch_scc1 L_rep_end
    s_load_dwordx2 s[4:5], s[0:1], 104
    s_waitcnt lgkmcnt(0)
    s_add_u32 s6, s4, {off(A_)}
    s_addc_u32 s7, s5, 0
    s_add_u32 s8, s4, {off(B_)}
    s_addc_u32 s9, s5, 0
    s_load_dword s10, s[6:7], 0
    s_load_dword s11, s[8:9], 0
    s_memrealtime s[12:13]
    s_waitcnt lgkmcnt(0)
    s_sub_u32 s10, s11, s10
    s_mul_i32 s10, s10, {mult}
    s_min_u32 s10, s10, 100000
L_rep_spin:
    s_memrealtime s[14:15]
    s_waitcnt lgkmcnt(0)
    s_sub_u32 s16, s14, s12
    s_cmp_lt_u32 s16, s10
    s_cbranch_scc1 L_rep_spin
L_rep_end:
    s_endpgm
'''
    t = t.replace('.section .rodata,"a"', code + '.section .rodata,"a"', 1)
    t += '.p2align 6\n' + kernel_desc('rep_kernel', 8, 32, 8)
    open(dst, 'w').write(t)
if __name__ == '__main__':
    src = sys.argv[1]
    add_reporter(src, 'r_null.s', (1,0,0), (1,0,0))
    add_reporter(src, 'r_span.s', (0,0,0), (5,0,2))
    add_reporter(src, 'r_loop.s', (1,0,2), (1,0,3))
    add_reporter(src, 'r_pro.s', (1,0,0), (1,0,2))
    add_reporter(src, 'r_pre.s', (0,0,0), (1,0,0))
    add_reporter(src, 'r_post.s', (2,0,0), (5,0,2))
```

```python
import sys, json
import rep
from c16 import *
def mk(src, dst, a, b, wg=0):
    names = json.loads([x for x in open(src).read().split('\n')[:40] if x.startswith('; STAMPS')][0][9:])
    def loc(n):
        k, nm = n.split('.')
        kidx = list(names).index(k + '_kernel')
        return kidx, names[k + '_kernel'].index(nm)
    t = open(src).read()
    rep.add_reporter(src, dst, (0,0,0), (0,0,1))
    t = open(dst).read()
    off = lambda x: DBG_OFF + x[0]*0x100000 + wg*4*512 + x[1]*8
    import re
    t = re.sub(r's_add_u32 s6, s4, \d+', f's_add_u32 s6, s4, {off(loc(a))}', t)
    t = re.sub(r's_add_u32 s8, s4, \d+', f's_add_u32 s8, s4, {off(loc(b))}', t)
    open(dst, 'w').write(t)
if __name__ == '__main__':
    src = sys.argv[1]
    out = []
    for spec in sys.argv[2:]:
        a, b = spec.split(':')
        n = 'r_' + a.replace('.','') + '_' + b.replace('.','') + '.s'
        mk(src, n, a, b); out.append('"work/%s"' % n)
    print('[' + ', '.join(out) + ']')
```

```python
from c16 import *
import a16
from a16 import (VKADDR, VVADDR, VKDMA, VVDMA, VL16, VONE, VT, VTMP, VQ, VS, VP, Q, S, P, NM, L, QACC, O, KF, VF,
                 SK, SV, SOFF, SM0, SCNT, STHR, OFFS, THR, kread, dma, qk_list, emit_rowmax, emit_rare_sub)
from k16 import code_srd, fragaddr_s

MODP = 0x4000
CTR = 0x20000
K_H, K_2, K_P, K_A = 0, 4, 8, 12
NLINE = 512
XT = CTR + NLINE*128
SW, SA, SO, SF, SX, SWO = 24, 28, 32, 52, 60, 96
GI_OFF = 0x3000000
VST = 22

class St:
    def __init__(self, A, o): self.A, self.o, self.n, self.names = A, o, 0, []
    def __call__(self, name):
        if not self.o.timing: return
        A = self.A
        A('s_memtime s[92:93]'); A('s_memrealtime s[94:95]'); A('s_waitcnt lgkmcnt(0)')
        A(f'v_writelane_b32 v{VST}, s94, {self.n}'); A(f'v_writelane_b32 v{VST+1}, s92, {self.n}')
        self.n += 1; self.names.append(name)
    def dump(self, kidx, ws):
        if not self.o.timing: return
        self.A(f'''
        s_lshl_b32 s92, s2, 2
        s_add_u32 s92, s92, s15
        s_lshl_b32 s92, s92, 9
        s_add_u32 s92, s92, {DBG_OFF + kidx*0x100000}
        s_add_u32 s92, s{ws}, s92
        s_addc_u32 s93, s{ws+1}, 0
        s_and_b32 s93, s93, 0xffff
        s_mov_b32 s94, 512
        s_mov_b32 s95, 0x20000
        v_lshlrev_b32 v1, 3, v0
        buffer_store_dwordx2 v[{VST}:{VST+1}], v1, s[92:95], 0 offen
        ''')

def srd_at(A, d, base, off_s, imm, nrec):
    if off_s is not None and imm:
        A(f's_add_u32 s{d}, s{off_s}, {imm}'); A(f's_add_u32 s{d}, s{base}, s{d}')
    elif off_s is not None: A(f's_add_u32 s{d}, s{base}, s{off_s}')
    else: A(f's_add_u32 s{d}, s{base}, {imm}')
    A(f's_addc_u32 s{d+1}, s{base+1}, 0')
    srd(A, d, f's{d}', f's{d+1}', nrec)

def gen_mod(A, name, o):
    kernel_begin(A, name)
    st = St(A, o)
    A(f'''
    s_cmp_ge_u32 s2, 256
    s_cbranch_scc1 L_end_{name}
    s_load_dwordx8 s[4:11], s[0:1], 0
    s_load_dwordx4 s[16:19], s[0:1], 72
    s_load_dwordx2 s[12:13], s[0:1], 104
    s_load_dwordx4 s[48:51], s[0:1], 48
    v_lshrrev_b32 v1, 6, v0
    v_and_b32 v0, 63, v0
    v_readfirstlane_b32 s15, v1
    v_lshlrev_b32 v5, 4, v0
    s_and_b32 s33, s2, 7
    s_lshr_b32 s34, s2, 3
    ''')
    st('start')
    A(f'''
    s_cmp_lg_u32 s15, 0
    s_cbranch_scc1 L_pf_{name}
    s_cmp_ge_u32 s2, 192
    s_cbranch_scc1 L_zero_{name}
    ''')
    himg_dma_off(A, 6, 3, 6144)
    A(f'''
    v_add_u32 v4, {8*6144-1024}, v3
    v_add_u32 v6, {2*(8*6144-1024)}, v3
    v_add_u32 v7, {3*(8*6144-1024)}, v3
    s_and_b32 s36, s2, 3
    s_lshr_b32 s37, s2, 2
    s_mul_i32 s39, s36, {128*6144}
    s_lshl_b32 s40, s37, 7
    s_add_u32 s39, s39, s40
    s_lshl_b32 s40, s36, 8
    v_lshl_add_u32 v2, v0, 2, s40
    s_waitcnt lgkmcnt(0)
    ''')
    srd(A, 20, 's16', 's17', 1024)
    srd(A, 24, 's18', 's19', 512*6144)
    A('buffer_load_dword v8, v2, s[20:23], 0 offen')
    for ks in range(4):
        A(f's_mov_b32 m0, {ks*4096}')
        if ks: A(f's_add_u32 s39, s39, {32*6144}')
        else: A('s_nop 0')
        for p, r in enumerate((3, 4, 6, 7)):
            A(f'buffer_load_dwordx4 v{r}, s[24:27], s39 offen offset:{p*1024} lds')
    himg_read_addr(A, 13, 16, 0, nmat=1)
    A(f's_mul_i32 s40, s36, 12288')
    A(f's_lshl_b32 s41, s37, 8')
    A(f's_add_u32 s40, s40, s41')
    srd_at(A, 28, 12, 40, MODP, 256)
    A(f'''
    v_lshrrev_b32 v11, 4, v0
    v_lshlrev_b32 v12, 2, v0
    v_lshlrev_b32 v13, 3, v11
    v_lshlrev_b32 v15, 4, v11
    v_and_b32 v14, 15, v0
    s_waitcnt vmcnt(16)
    v_and_b32 v9, 0xffff0000, v8
    v_lshlrev_b32 v8, 16, v8
    v_mul_f32 v24, {f2u(-LOG2E)}, v8
    v_mul_f32 v25, {f2u(-LOG2E)}, v9
    v_exp_f32 v24, v24
    v_exp_f32 v25, v25
    v_cmp_eq_u32 vcc, 0, v14
    v_add_f32 v24, 1.0, v24
    v_add_f32 v25, 1.0, v25
    v_rcp_f32 v26, v24
    v_rcp_f32 v27, v25
    s_nop 0
    v_fma_f32 v24, -v24, v26, 1.0
    v_fma_f32 v25, -v25, v27, 1.0
    v_fmac_f32 v26, v24, v26
    v_fmac_f32 v27, v25, v27
    v_mul_f32 v8, v8, v26
    v_mul_f32 v9, v9, v27
    v_cvt_pk_bf16_f32 v8, v8, v9
    ds_write_b32 v12, v8 offset:16384
    s_waitcnt lgkmcnt(0)
    ''')
    for ks in range(4):
        for j2 in range(2): A(f'ds_read_b64 {v(32+ks*4+2*j2,2)}, v13 offset:{16384 + ks*64 + j2*32}')
    for ks in range(4):
        A(f's_waitcnt vmcnt({12-4*ks})')
        for nt in range(4):
            for j2 in range(2):
                A(f'ds_read_b64_tr_b16 {v(64+(ks*4+nt)*4+2*j2,2)}, v{16+nt} offset:{ks*4096 + j2*2048}')
    for ks in range(4):
        if ks in (0, 3): A(f's_waitcnt lgkmcnt({8 if ks == 0 else 0})')
        for nt in range(4):
            A(f'{MF} {v(48+nt*4,4)}, {v(64+(ks*4+nt)*4,4)}, {v(32+4*ks,4)}, {"0" if ks == 0 else v(48+nt*4,4)}')
    A('s_nop 7')
    A('s_and_saveexec_b64 s[44:45], vcc')
    for nt in range(4): A(f'buffer_store_dwordx4 {v(48+nt*4,4)}, v15, s[28:31], 0 offen offset:{nt*64} sc1')
    A('s_mov_b64 exec, s[44:45]')
    A(f's_branch L_fin_{name}')
    A(f'L_zero_{name}:')
    A('s_cmp_lt_u32 s2, 248')
    A(f's_cbranch_scc1 L_fin_{name}')
    A('s_waitcnt lgkmcnt(0)')
    srd_at(A, 28, 12, None, CTR, NLINE*128)
    A(f'''
    v_lshlrev_b32 v2, 7, v0
    v_mov_b32 v8, 0
    v_mov_b32 v9, 0
    v_mov_b32 v10, 0
    v_mov_b32 v11, 0
    s_lshl_b32 s40, s33, 13
    buffer_store_dwordx4 v[8:11], v2, s[28:31], s40 offen sc1
    s_branch L_fin_{name}
    L_pf_{name}:
    {'s_cmp_ge_u32 s15, 4' if o.relay else ''}
    {f's_cbranch_scc1 L_rl_{name}' if o.relay else ''}
    s_waitcnt lgkmcnt(0)
    s_cmp_eq_u32 s15, 3
    s_cbranch_scc1 L_pf3_{name}
    ''')
    srd(A, 20, 's10', 's11', 512*8192)
    A(f'''
    s_lshl_b32 s40, s34, 1
    s_add_u32 s40, s40, s15
    s_sub_u32 s40, s40, 1
    s_lshl_b32 s40, s40, 16
    s_lshl_b32 s41, s33, 10
    s_add_u32 s40, s40, s41
    ''')
    for i in range(8):
        A(f'buffer_load_dwordx4 v[8:11], v5, s[20:23], s40 offen')
        if i < 7: A('s_add_u32 s40, s40, 8192')
    A(f's_branch L_fin_{name}')
    A(f'L_pf3_{name}:')
    code_srd(A, 20, 'main_kernel', 'L_hot_end', name)
    A('s_lshl_b32 s40, s34, 11')
    A('buffer_load_dwordx4 v[8:11], v5, s[20:23], s40 offen')
    A('buffer_load_dwordx4 v[8:11], v5, s[20:23], s40 offen offset:1024')
    srd(A, 24, 's4', 's5', 2048*1024)
    A('s_lshl_b32 s40, s2, 13')
    A('s_add_u32 s41, s40, 4096')
    for i in range(8):
        A(f'buffer_load_dwordx4 v[8:11], v5, s[24:27], s{40+(i>>2)} offen offset:{(i&3)*1024}')
    def relay():
        A(f's_branch L_fin_{name}')
        A(f'L_rl_{name}:')
        himg_dma_off(A, 6, 3, 2752)
        A(f'''
    s_and_b32 s36, s15, 1
    s_lshl_b32 s37, s2, 1
    s_add_u32 s36, s36, s37
    s_mul_i32 s36, s36, 3
    s_bfe_u32 s37, s15, 0x10001
    s_lshl_b32 s37, s37, 12
    s_cmp_ge_u32 s36, 1408
    s_cbranch_scc1 L_fin_{name}
    s_waitcnt lgkmcnt(0)
    s_cmp_ge_u32 s15, 6
    s_cselect_b32 s20, s50, s48
    s_cselect_b32 s21, s51, s49
    ''')
        srd(A, 20, 's20', 's21', 512*2752)
        for n in range(3):
            A(f'''
        s_add_u32 s38, s36, {n}
        s_min_u32 s38, s38, 1407
        s_lshr_b32 s39, s38, 6
        s_and_b32 s38, s38, 63
        s_mul_i32 s40, s38, {8*2752}
        s_lshl_b32 s41, s39, 7
        s_add_u32 s40, s40, s41
        buffer_load_dwordx4 {v(8+4*n,4)}, v3, s[20:23], s40 offen
        s_lshl_b32 s39, s39, 17
        s_lshr_b32 s41, s38, 2
        s_lshl_b32 s41, s41, 13
        s_add_u32 s39, s39, s41
        s_and_b32 s38, s38, 3
        s_lshl_b32 s38, s38, 10
        s_add_u32 s39, s39, s38
        s_add_u32 s{44+n}, s39, s37
        ''')
        srd_at(A, 28, 12, None, GI_OFF, 22*131072)
        for n in range(3):
            A(f's_waitcnt vmcnt(2)')
            A(f'buffer_store_dwordx4 {v(8+4*n,4)}, v5, s[28:31], s{44+n} offen sc1')
    if o.relay: relay()
    A(f'L_fin_{name}:')
    if o.timing:
        A('s_waitcnt vmcnt(0) lgkmcnt(0)')
        if o.relay: A('s_lshr_b32 s15, s15, 1')
    st('end')
    st.dump(0, 12)
    A(f'L_end_{name}:')
    A('s_endpgm')
    return (name, 256, 512 if o.relay else 256, 17408, 128, 100, 128), st.names

lab = [0]
SLP = ['']
def signal(A, soff, vmn, cond=None, nrep=8):
    lab[0] += 1; n = lab[0]
    A('v_lshlrev_b32 v3, 7, v0')
    A('v_mov_b32 v1, 1')
    A(f's_waitcnt vmcnt({vmn})')
    A('s_barrier')
    A(f's_cmp_lg_u32 s15, {cond if cond else 0}')
    A(f's_cbranch_scc1 L_sig{n}')
    A(f's_mov_b64 exec, {(1 << nrep) - 1}')
    A(f'buffer_atomic_add v1, v3, {s(SF,4)}, s{soff} offen sc1')
    A('s_mov_b64 exec, -1')
    A(f'L_sig{n}:')

def wait_ctr(A, soff, target, nl, pre_bar=None, clamp=None):
    lab[0] += 1; n = lab[0]
    if clamp: A(f'v_min_u32 v2, {clamp}, v0'); A('v_lshlrev_b32 v2, 10, v2')
    else: A('v_lshlrev_b32 v2, 10, v0')
    A(f'''
    s_cmp_lg_u32 s15, 0
    s_cbranch_scc1 L_wt{n}
    s_mov_b32 s40, 0
    s_mov_b64 exec, {(1 << nl) - 1}
    L_poll{n}:
    v_mov_b32 v1, 0
    buffer_atomic_add v1, v2, {s(SF,4)}, s{soff} offen sc0 sc1
    s_add_u32 s40, s40, 1
    s_waitcnt vmcnt(0)
    v_cmp_gt_u32 vcc, {target}, v1
    s_cbranch_vccz L_wt{n}
    {SLP[0]}
    s_cmp_lt_u32 s40, 0x40000
    s_cbranch_scc1 L_poll{n}
    L_wt{n}:
    s_mov_b64 exec, -1
    ''')
    if pre_bar: A(pre_bar)
    A('s_barrier')

class Rebase:
    def __init__(self, regs, base): self.regs, self.base = regs, base
    def fix(self, A, lo, span):
        if lo < self.base or lo + span > self.base + 65536:
            d = lo - self.base
            for r in self.regs:
                A(f'v_add_u32 v{r}, {d}, v{r}' if d > 0 else f'v_subrev_u32 v{r}, {-d}, v{r}')
            self.base = lo
    def off(self, x): return x - self.base

def gemm(A, vm, chunks, NQ, NT, acc, wf, bop, rb, ldsoff, j2off, first, sched, bars, order='t', last_next=None, span=8192, st=None):
    def emit(lst):
        for ins, tag in lst:
            A(ins)
            if tag is not None: vm.add(tag)
    nm = NT*NQ
    for k, c in enumerate(chunks):
        n = vm.need(lambda x: (x[0] == 'a' and x[1] <= c) or (x[0] == 'w' and x[1] <= c + 1))
        A(f's_waitcnt vmcnt({n}) lgkmcnt(0)' if n is not None else 's_waitcnt lgkmcnt(0)')
        if bars(c): A('s_barrier')
        if st: st(f'c{c}')
        nx = chunks[k+1] if k + 1 < len(chunks) else last_next
        rd = []
        if nx is not None:
            rb.fix(A, ldsoff(nx), span)
            rd = wreads(nx, NT, wf, rb, ldsoff, j2off)
        pairs = [(qb, nt) for nt in range(NT) for qb in range(NQ)] if order == 't' else [(qb, nt) for qb in range(NQ) for nt in range(NT)]
        mf = [f'{MF} {v(acc(qb,nt),4)}, {wf(c&1,nt,4)}, {bop(c,qb)}, {"0" if c == first else v(acc(qb,nt),4)}' for qb, nt in pairs]
        units = units_of(sched(c))
        F = {g: [] for g in range(nm)}
        ug = [(i * (nm - 1)) // len(units) + (1 if len(units) < nm//2 else 0) for i in range(len(units))] if units else []
        for g, u in zip(ug, units): F[g] += u
        free = [g for g in range(nm - 4) if g not in ug]
        if 2*len(free) < len(rd): free = list(range(nm - 4))
        per = 1 if len(free) >= len(rd) else 2
        for i, r in enumerate(rd): F[free[i // per]].insert(0, (r, None))
        for g in range(nm):
            A(mf[g]); emit(F[g])

def place(A, vm, mf, rd, vmem, valu=(), valu_from=0):
    def emit(lst):
        for ins, tag in lst:
            A(ins)
            if tag is not None: vm.add(tag)
    nm = len(mf)
    units = units_of(vmem)
    F = {g: [] for g in range(nm)}
    cost = {g: 0 for g in range(nm)}
    ug = [(i * (nm - 1)) // len(units) + (1 if len(units) < nm//2 else 0) for i in range(len(units))] if units else []
    for g, u in zip(ug, units): F[g] += u; cost[g] += 2
    free = [g for g in range(nm - 4) if g not in ug]
    if 2*len(free) < len(rd): free = list(range(nm - 4))
    per = 1 if (len(free) >= len(rd) and not valu) else 2
    for i, r in enumerate(rd): F[free[i // per]].insert(0, (r, None)); cost[free[i // per]] += 1
    valu = [x if isinstance(x, tuple) else (x, None) for x in valu]
    gaps = list(range(valu_from, nm))
    w = lambda it: 2 if it[0].startswith('buffer') else 1
    tot = sum(w(x) for x in valu) + sum(cost[g] for g in gaps)
    lvl = max(2, -(-tot // len(gaps)))
    i = 0
    for g in gaps:
        while i < len(valu) and (cost[g] + w(valu[i]) <= lvl or g == nm - 1):
            if valu[i][0].startswith('buffer') and cost[g] > 0 and g != nm - 1: break
            F[g].append(valu[i]); cost[g] += w(valu[i]); i += 1
    for g in range(nm):
        A(mf[g]); emit(F[g])

def wreads(c, NT, wf, rb, ldsoff, j2off):
    return [f'ds_read_b64_tr_b16 {wf(c&1,nt,2,2*j2)}, v{rb.regs[nt]} offset:{rb.off(ldsoff(c)) + j2*j2off}' for nt in range(NT) for j2 in range(2)]

def row8_addrs(A, t, vx, vf, vm_):
    A(f'''
    v_and_b32 v{t}, 7, v21
    v_lshrrev_b32 v{t+1}, 5, v21
    v_bfe_u32 v{t+2}, v21, 3, 2
    v_lshlrev_b32 v{vf}, 12, v{t+1}
    v_lshl_add_u32 v{vf}, v{t+2}, 8, v{vf}
    v_lshl_add_u32 v{vf}, v{t}, 4, v{vf}
    v_lshlrev_b32 v{vm_}, 7, v{t+1}
    v_lshl_add_u32 v{vm_}, v{t+2}, 4, v{vm_}
    v_lshrrev_b32 v{vx}, 1, v{vm_}
    v_lshl_add_u32 v{vx}, v{t}, 10, v{vx}
    ''')

def row_stats_write(A, x, r, t, ldsbase):
    A(f'''
    v_mov_b32 v{r}, 0
    v_mov_b32 v{r+1}, 0
    v_mov_b32 v{r+3}, 0x3f803f80
    ''')
    for j in range(8):
        A(f'v_dot2c_f32_bf16 v{r}, v{x+j}, v{r+3}')
        A(f'v_dot2c_f32_bf16 v{r+1}, v{x+j}, v{x+j}')
    A(f'''
    s_lshl_b32 s40, s15, 3
    v_bfe_u32 v{r+2}, v0, 4, 1
    v_lshl_add_u32 v{r+2}, v{r+2}, 2, s40
    v_add_f32_dpp v{r}, v{r}, v{r} row_ror:8 row_mask:0xf bank_mask:0xf
    v_add_f32_dpp v{r+1}, v{r+1}, v{r+1} row_ror:8 row_mask:0xf bank_mask:0xf
    v_lshl_add_u32 v{r+2}, v{t}, 5, v{r+2}
    s_nop 0
    v_permlane16_swap_b32 v{r}, v{r+1}
    v_add_f32 v{r}, v{r}, v{r+1}
    v_mov_b32 v{r+1}, v{r}
    s_nop 1
    v_permlane32_swap_b32 v{r}, v{r+1}
    v_add_f32 v{r}, v{r}, v{r+1}
    ds_write_b32 v{r+2}, v{r} offset:{ldsbase}
    ''')

def row_stats_finish(A, b, mean, rstd):
    A(f'''
    v_add_f32 v{b}, v{b}, v{b+2}
    v_add_f32 v{b+1}, v{b+1}, v{b+3}
    v_add_f32 v{b+4}, v{b+4}, v{b+6}
    v_add_f32 v{b+5}, v{b+5}, v{b+7}
    s_mov_b32 s40, {f2u(1/512)}
    v_add_f32 v{b}, v{b}, v{b+4}
    v_add_f32 v{b+1}, v{b+1}, v{b+5}
    v_mul_f32 v{mean}, s40, v{b}
    v_mul_f32 v{b}, v{mean}, v{mean}
    v_fma_f32 v{b}, v{b+1}, s40, -v{b}
    v_max_f32 v{b}, 0, v{b}
    v_add_f32 v{b}, {f2u(1e-5)}, v{b}
    v_rsq_f32 v{rstd}, v{b}
    s_nop 0
    v_mul_f32 v{mean}, v{mean}, v{rstd}
    ''')

def lds_o(c): return 65536 + 8192*c if c < 12 else 32768 + 8192*(c-12)
def lds_q(c): return 32768 + 8192*c
def lds_g(c): return 8192*c if c < 4 else 65536 + 8192*(c-4)
RSC = 32768

def gen_main(A, name, o):
    kernel_begin(A, name)
    st = St(A, o)
    VWADDR, VWDMA = 240, 248
    SLP[0] = f's_sleep {o.sleep}' if o.sleep else ''
    A(f'''
    s_cmp_ge_u32 s2, 256
    s_cbranch_scc1 L_end_{name}
    s_load_dwordx8 s[4:11], s[0:1], 0
    s_load_dwordx2 s[72:73], s[0:1], 104
    s_load_dwordx2 s[12:13], s[0:1], 32
    s_load_dwordx4 s[64:67], s[0:1], 48
    s_load_dwordx2 s[68:69], s[0:1], 64
    s_load_dwordx2 s[70:71], s[0:1], 88
    s_and_b32 s58, s2, 7
    s_bfe_u32 s14, s2, 0x20003
    s_lshr_b32 s57, s2, 5
    s_lshl_b32 s56, s58, 2
    s_add_u32 s56, s56, s14
    v_mov_b32 v21, v0
    v_lshrrev_b32 v1, 6, v0
    v_and_b32 v0, 63, v0
    v_readfirstlane_b32 s15, v1
    v_lshlrev_b32 v{VL16}, 4, v0
    v_lshlrev_b32 v54, 4, v21
    ''')
    st('start')
    row8_addrs(A, 48, 51, 52, 53)
    img_dma_chunks(A, 1, VVDMA)
    A(f'''
    s_lshl_b32 s40, s15, 3
    v_add_u32 v37, s40, v1
    v_lshlrev_b32 v2, 13, v37
    v_lshl_add_u32 v{VWDMA}, v{VVDMA}, 4, v2
    v_lshl_add_u32 v{VWDMA+1}, v{VVDMA+1}, 4, v2
    v_add_u32 v{VWDMA+1}, {4*8192-1024}, v{VWDMA+1}
    s_lshl_b32 s48, s15, 11
    s_mul_i32 s50, s14, {o.rot[0]}
    s_mul_i32 s49, s57, {o.rot[1]}
    s_add_u32 s49, s49, s50
    s_mul_i32 s50, s58, {o.rot[2]}
    s_add_u32 s49, s49, s50
    s_and_b32 s49, s49, 15
    s_mov_b32 s50, s49
    s_lshl_b32 s59, s57, 2
    s_add_u32 s59, s59, s15
    s_lshl_b32 s40, s2, 13
    s_lshl_b32 s41, s56, 8
    s_waitcnt lgkmcnt(0)
    ''')
    vm = VM()
    def E(lst):
        for ins, tag in lst:
            A(ins)
            if tag is not None: vm.add(tag)
    srd_at(A, SX, 4, 40, 0, 8192)
    srd_at(A, SF, 72, None, 0, XT + 1024)
    for p in range(2):
        for j in range(2):
            E([(f'buffer_load_dwordx2 {v(56+p*4+j*2,2)}, v51, {s(SX,4)}, 0 offen offset:{p*512+j*32}', ('x', 0))])
    for k in range(4):
        E([(f's_mov_b32 s42, {MODP + k*12288}', None), (f'buffer_load_dwordx4 {v(64+4*k,4)}, v54, {s(SF,4)}, s42 offen', ('m', 0))])
    A(f'''
    s_getreg_b32 s90, hwreg(HW_REG_XCC_ID, 0, 4)
    s_lshl_b32 s90, 1, s90
    s_lshl_b32 s91, s57, 3
    s_add_u32 s91, s91, s58
    s_lshl_b32 s91, s91, 7
    s_add_u32 s91, s91, {CTR + 256*128 + K_2}
    v_mov_b32 v55, s90
    s_cmp_lg_u32 s15, 0
    s_cbranch_scc1 L_noid_{name}
    s_mov_b64 exec, 1
    buffer_atomic_or v55, off, {s(SF,4)}, s91 sc1
    s_mov_b64 exec, -1
    L_noid_{name}:
    ''')
    srd_at(A, SW, 10, 41, 0, 511*8192 + 256)
    iwq = mk_w(VWDMA, 32768, 32*8192, SW, 48, 49, 43, o.wflags)
    nA, nB = o.wqA, o.wqB
    for c in range(nA): E(iwq(c))
    A(f"""
    s_lshr_b32 s76, s2, 3
    s_lshl_b32 s74, s76, 16
    s_bfe_u32 s40, s2, 0x20001
    s_lshl_b32 s40, s40, 10
    s_add_u32 s74, s74, s40
    s_and_b32 s40, s2, 1
    s_lshl_b32 s40, s40, 7
    s_add_u32 s74, s74, s40
    s_mov_b32 s75, 32768
    s_lshl_b32 s76, s76, 10
    s_add_u32 s77, s76, {CTR + K_H}
    s_lshl_b32 s45, s58, 7
    s_lshl_b32 s78, s57, 12
    s_add_u32 s78, s78, s45
    s_add_u32 s78, s78, {CTR + K_H}
    """)
    srd_at(A, SO, 72, 74, H_OFF, 65536)
    A(f's_lshl_b32 s40, s59, 16')
    srd_at(A, SA, 72, 40, H_OFF, 65536)
    A(f's_waitcnt vmcnt({vm.need(lambda x: x[0] == "x")})')
    row_stats_write(A, 56, 96, 48, 4096)
    A(f"""
    s_lshr_b32 s40, s15, 1
    v_cvt_f32_u32 v99, s40
    s_mov_b32 s41, {f2u(QSCALE)}
    s_waitcnt vmcnt({vm.need(lambda x: x[0] == "m")})
    """)
    for j in range(4):
        A(f'v_add_f32 v{64+j}, v{64+j}, v{68+j}')
        A(f'v_add_f32 v{72+j}, v{72+j}, v{76+j}')
    for j in range(4): A(f'v_add_f32 v{64+j}, v{64+j}, v{72+j}')
    A('v_mul_f32 v99, s41, v99')
    A('v_cvt_pk_bf16_f32 v68, v64, v65'); A('v_cvt_pk_bf16_f32 v69, v66, v67')
    A('v_lshlrev_b32 v64, 16, v68'); A('v_and_b32 v65, 0xffff0000, v68'); A('v_lshlrev_b32 v66, 16, v69'); A('v_and_b32 v67, 0xffff0000, v69')
    for j in range(4): A(f'v_fma_f32 v{64+j}, v{64+j}, s41, v99')
    A(f"""
    ds_write_b128 v54, v[64:67]
    v_lshlrev_b32 v96, 5, v48
    s_waitcnt lgkmcnt(0)
    s_barrier
    ds_read_b128 v[100:103], v96 offset:4096
    ds_read_b128 v[104:107], v96 offset:4112
    """)
    for p in range(2):
        for j in range(2):
            A(f'ds_read_b128 {v(112+p*8+j*4,4)}, v53 offset:{p*1024+j*64}')
            A(f'ds_read_b128 {v(128+p*8+j*4,4)}, v53 offset:{2048+p*1024+j*64}')
    unpack8(A, 56, 80); unpack8(A, 60, 88)
    A('s_waitcnt lgkmcnt(8)')
    row_stats_finish(A, 100, 108, 109)
    for p in range(2):
        for j in range(8): A(f'v_fma_f32 v{80+p*8+j}, v{80+p*8+j}, v109, -v108')
        A(f's_waitcnt lgkmcnt({4 if p == 0 else 0})')
        for j in range(8): A(f'v_fmac_f32 v{112+p*8+j}, v{80+p*8+j}, v{128+p*8+j}')
        for j in range(4): A(f'v_cvt_pk_bf16_f32 v{56+p*4+j}, v{112+p*8+2*j}, v{113+p*8+2*j}')
        E([(f'buffer_store_dwordx4 {v(56+p*4,4)}, v52, {s(SO,4)}, {"s75" if p else "0"} offen sc1', ('s', 0))])
    st('h_stored')
    for c in range(nA, nB): E(iwq(c))
    img_read_addr(A, VTMP, VWADDR, 32768)
    signal(A, 77, vm.need(lambda x: x[0] == 's'))
    st('h_signal')
    wfv = lambda b, nt, n, off=0: v(VQ + (b*8+nt)*4 + off, n)
    rb = Rebase(list(range(VWADDR, VWADDR+8)), 32768)
    A.ext(wreads(0, 8, wfv, rb, lds_q, 4096))
    A('s_mov_b32 s77, s78')
    T = Asm()
    T(f's_lshl_b32 s40, s56, 19')
    srd_at(T, SK, 6, 40, 0, 524288)
    T(f"""
    s_add_u32 s{SV}, s8, s40
    s_addc_u32 s{SV+1}, s9, 0
    s_sub_u32 s{SV}, s{SV}, {2048+16384}
    s_subb_u32 s{SV+1}, s{SV+1}, 0
    """)
    srd(T, SV, f's{SV}', f's{SV+1}', 524288 + 2048 + 16384)
    nsal = len(T.lines)
    T(f"""
    s_lshl_b32 s{SM0}, s15, 12
    s_mov_b32 s{STHR}, {f2u(THR)}
    v_lshlrev_b32 v2, 10, v37
    v_lshl_add_u32 v44, v{VVDMA}, 4, v2
    v_lshl_add_u32 v45, v{VVDMA+1}, 4, v2
    v_add_u32 v45, {4*1024-1024}, v45
    v_lshlrev_b32 v2, 8, v37
    v_lshl_add_u32 v{VVDMA}, v{VVDMA}, 4, v2
    v_lshl_add_u32 v{VVDMA+1}, v{VVDMA+1}, 4, v2
    v_xor_b32 v3, v37, v0
    v_and_b32 v3, 15, v3
    v_lshl_add_u32 v{VKDMA}, v3, 4, v2
    v_xor_b32 v3, 4, v3
    v_lshl_add_u32 v{VKDMA+1}, v3, 4, v2
    v_bfe_u32 v2, v0, 3, 1
    v_lshlrev_b32 v2, 12, v2
    v_and_b32 v3, 7, v0
    v_lshl_add_u32 v2, v3, 8, v2
    v_lshrrev_b32 v3, 4, v0
    v_xor_b32 v3, v3, v0
    v_and_b32 v3, 15, v3
    """)
    for ds in range(4):
        T(f'v_xor_b32 v{VKADDR+ds}, {4*ds}, v3')
        T(f'v_lshl_add_u32 v{VKADDR+ds}, v{VKADDR+ds}, 4, v2')
    img_read_addr(T, VTMP, VVADDR, 0, rowform='win')
    for r in range(4): T(f'v_mov_b32 v{VONE+r}, 0x3f803f80')
    asetup = [l.strip() for l in T.lines]
    def kvwin(win, with_v):
        Lx = [(f's_add_u32 m0, s{SM0}, {((win+1)%4)*16384}', None), (f's_mov_b32 s{SOFF}, {(win+1)*8192}', None)]
        return Lx + [(dma(n, o), ('kv', win)) for n in range(4 if with_v else 2)]
    vm = VM()
    hf = lambda c, qb: (c*4+qb)*4
    iact = mk_act(4, SA, [VL16]*4, [0,1024,2048,3072], 50, 44, hf, 'sc1')
    A.ext(asetup)
    A(f'''
    s_lshl_b32 s40, s58, 19
    s_lshl_b32 s41, s14, 8
    s_add_u32 s40, s40, s41
    ''')
    srd_at(A, SWO, 12, 40, 0, 511*1024 + 256)
    A(f'''
    s_add_u32 s51, s48, 65536
    s_lshr_b32 s78, s2, 3
    s_mul_i32 s79, s58, 31
    s_add_u32 s79, s79, s78
    s_mul_i32 s40, s58, {31*745}
    s_lshr_b32 s40, s40, 13
    s_lshl_b32 s40, s40, {17 if o.relay else 7}
    s_mul_i32 s41, s78, {16384 if o.relay else 16*2752}
    s_add_u32 s40, s40, s41
    s_and_b32 s42, s15, 1
    s_mul_i32 s41, s42, {8192 if o.relay else 0}
    s_add_u32 s40, s40, s41
    s_add_u32 s40, s40, {GI_OFF if o.relay else 0}
    s_cmp_eq_u32 s15, 1
    s_cselect_b32 s88, s66, s64
    s_cselect_b32 s89, s67, s65
    s_mul_i32 s41, {'s78' if o.pfd == 'l2' else 's2'}, {43*1024 if o.pfd == 'l2' else 5504}
    s_mul_i32 s43, s42, {22*1024 if o.pfd == 'l2' else 4096}
    s_add_u32 s41, s41, s43
    s_cmp_ge_u32 s15, 2
    s_cselect_b32 s{SX}, s68, {'s72' if o.relay else 's88'}
    s_cselect_b32 s{SX+1}, s69, {'s73' if o.relay else 's89'}
    s_movk_i32 s88, {2048 if o.relay else 4*2752}
    s_cselect_b32 s88, 2048, s88
    s_movk_i32 s89, {512 if o.relay else 2752}
    s_cselect_b32 s89, 512, s89
    v_lshrrev_b32 v2, 4, v0
    v_and_b32 v3, 15, v0
    v_mul_u32_u24 v2, s89, v2
    v_mul_u32_u24 v3, 40, v3
    v_add_u32 v43, v3, v2
    s_cselect_b32 s80, s41, s40
    s_cselect_b32 s81, {o.pfs[1]}, {o.pfs[0]}
    s_cselect_b32 s86, {o.pfs[1] - (11 if o.pfd == 'l2' else 2)}, {o.pfs[0] - 4}
    s_mov_b32 s87, {GI_OFF + 22*131072 if o.relay else 1376*1024}
    s_cselect_b32 s87, {1376*1024}, s87
    ''')
    srd(A, SX, f's{SX}', f's{SX+1}', 0)
    A(f'''
    s_lshl_b32 s40, s59, 19
    s_lshl_b32 s41, s56, 14
    s_add_u32 s41, s40, s41
    ''')
    srd_at(A, SO, 72, 41, O_OFF, 16384)
    wait_ctr(A, 77, 8, 4, pre_bar='s_waitcnt vmcnt(0)')
    A(f'buffer_load_dword v47, off, {s(SF,4)}, s91 sc1')
    st('h_ready')
    D0 = o.actD0
    for c in range(D0): E(iact(c))
    nx = [D0]; nw = [nB]
    def sched_q(c):
        g = []
        for _ in range(o.qact[c] if c < len(o.qact) else 0):
            if nx[0] < 16: g += iact(nx[0]); nx[0] += 1
        if nw[0] < 16 and c >= o.qw0: g += [(i_, ('wq', nw[0]) if t_ else None) for i_, t_ in iwq(nw[0])]; nw[0] += 1
        if c == 11: g += kvwin(-1, False) + kvwin(0, False)
        if c == 12: g += kvwin(1, True)
        if c == 13: g += kvwin(2, True)
        return g
    qunits = [[(c, nt) for nt in range(8)] for c in range(12)] + [[(c, nt) for nt in (2*m, 2*m+1) for c in range(12, 16)] for m in range(4)]
    wfq = lambda u, k, n, off=0: v(VQ + ((u&1)*8+k)*4 + off, n) if u < 12 else a(((u&1)*8+k)*4 + off, n)
    def qreads(u):
        rb.fix(A, lds_q(min(c for c, _ in qunits[u])), 8192 if u < 12 else 32768)
        return [f'ds_read_b64_tr_b16 {wfq(u,k,2,2*j2)}, v{rb.regs[nt]} offset:{rb.off(lds_q(c)) + j2*4096}' for k, (c, nt) in enumerate(qunits[u]) for j2 in range(2)]
    def qcvt(ds):
        L_ = [f'v_cvt_pk_bf16_f32 v{Q(qb,ds)+r}, v{QACC(qb,2*ds)+2*r}, v{QACC(qb,2*ds)+2*r+1}' for qb in range(4) for r in range(4)]
        return L_ + [f'v_permlane{k}_swap_b32 v{Q(qb,ds)+r}, v{Q(qb,ds)+2+r}' for k in (32, 16) for qb in range(4) for r in range(2)]
    for u, frs in enumerate(qunits):
        cmax = max(c for c, _ in frs)
        cn = max(c for c, _ in qunits[u+1]) if u + 1 < 16 else -1
        bar = u + 1 < 16 and cn >= nB and u <= 11 and (u == 11 or (u - nB) % 2 == 1)
        cw = (15 if u >= 10 else cn + 1) if bar else -1
        n = vm.need(lambda x: (x[0] == 'a' and x[1] <= cmax) or (x[0] == 'wq' and x[1] <= cw) or (x[0] == 'kv' and x[1] <= 0 and u == 15))
        A(f's_waitcnt vmcnt({n}) lgkmcnt(0)')
        if bar:
            assert nw[0] > min(cw, 15), (u, cw, nw)
        if bar or u == 15: A('s_barrier')
        if o.fine == 'q': st(f'q{u}')
        order = [(k, qb) for k in range(8) for qb in range(4)] if u < 12 else [(h*4+k, qb) for h in range(2) for qb in range(4) for k in range(4)]
        mf = [f'{MF} {v(QACC(qb,frs[k][1]),4)}, {wfq(u,k,4)}, {a(hf(frs[k][0],qb),4)}, {"0" if u == 0 else v(QACC(qb,frs[k][1]),4)}' for k, qb in order]
        rd = qreads(u+1) if u + 1 < 16 else [kread(kt, ds, 0) for kt in range(2) for ds in range(4)]
        place(A, vm, mf, rd, sched_q(u), qcvt(u-13) if u >= 13 else [], valu_from=6)
    assert nx[0] == 16 and nw[0] == 16
    st('qproj')
    A('v_cmp_ne_u32 vcc, s90, v47')
    A('s_lshl_b32 s49, s14, 2')
    A('s_lshl_b32 s40, s59, 19')
    A(f's_lshl_b32 s41, s58, 16')
    A(f's_add_u32 s41, s40, s41')
    srd_at(A, SA, 72, 41, O_OFF, 65536)
    A('s_cmp_eq_u64 vcc, 0')
    A(f's_cselect_b32 s91, {1 if o.local else 0}, 0')
    q3 = qcvt(3)
    A.ext(q3[:4])
    A('s_waitcnt lgkmcnt(0)')
    A('s_barrier')
    idx = [(qb, kt, ds) for kt in range(2) for qb in range(4) for ds in range(3)] + [(qb, kt, 3) for qb in range(4) for kt in range(2)]
    mf = [f'{MF} {v(S(0,qb,kt),4)}, {a(KF(kt,ds),4)}, {v(Q(qb,ds),4)}, {"0" if ds == 0 else v(S(0,qb,kt),4)}' for qb, kt, ds in idx]
    rest = q3[4:]
    for g in range(32):
        A(mf[g])
        if g == 0:
            A(f's_add_u32 m0, s{SM0}, 0')
            A(f's_mov_b32 s{SOFF}, {4*8192}')
        if g in (16, 18, 20, 22): A(dma(g//2 - 8, o))
        if 12 <= g < 15: A(kread(0, g-12, 1))
        if 24 <= g < 27: A(kread(1, g-24, 1))
        if g < 14: A.ext(rest[2*g:2*g+2])
    A(kread(0, 3, 1)); A(kread(1, 3, 1))
    A(f's_add_u32 s{SOFF}, s{SOFF}, 8192')
    mx = lambda qb: VT + qb
    tm = lambda qb: VT + 4 + qb
    for qb in range(4):
        b = S(0, qb)
        A(f'v_max3_f32 v{mx(qb)}, v{b}, v{b+1}, v{b+2}')
        A(f'v_max3_f32 v{tm(qb)}, v{b+3}, v{b+4}, v{b+5}')
        A(f'v_max3_f32 v{mx(qb)}, v{mx(qb)}, v{b+6}, v{b+7}')
        A(f'v_max_f32 v{mx(qb)}, v{mx(qb)}, v{tm(qb)}')
    for k in (16, 32):
        for qb in range(4): A(f'v_mov_b32 v{tm(qb)}, v{mx(qb)}')
        for qb in range(4): A(f'v_permlane{k}_swap_b32 v{mx(qb)}, v{tm(qb)}')
        for qb in range(4): A(f'v_max_f32 v{mx(qb)}, v{mx(qb)}, v{tm(qb)}')
    for qb in range(4): A(f'v_ceil_f32 v{mx(qb)}, v{mx(qb)}')
    for qb in range(4):
        for r in range(4): A(f'v_sub_f32 v{NM(qb)+r}, {f2u(-OFFS)}, v{mx(qb)}')
    for qb in range(4):
        for r in range(8): A(f'v_add_f32 v{S(0,qb)+r}, v{S(0,qb)+r}, v{NM(qb)}')
    A('s_waitcnt lgkmcnt(0)')
    st('loop_start')
    rare = []
    es = a16.emit_step
    def wo_dma(j): return f'buffer_load_dwordx4 v{44+j}, {s(SWO,4)}, s43 offen offset:{1024*j} {o.wflags} lds'
    x_wo = {o.xg[0]: ['s_mov_b32 m0, s51', 's_lshl_b32 s43, s49, 15'], o.xg[1]: [wo_dma(0)], o.xg[2]: [wo_dma(1)],
            o.xg[3]: [f's_cmp_gt_u32 s{SCNT}, 4', 's_cselect_b32 s42, 1, 0'], o.xg[4]: ['s_add_u32 s49, s49, s42', 's_lshl_b32 s42, s42, 13'],
            o.xg[5]: ['s_and_b32 s49, s49, 15', 's_add_u32 s51, s51, s42']}
    x_pf = {o.xg[0]-2: [f's_cmp_le_u32 s{SCNT}, s81', f's_cselect_b32 s{SX+2}, s87, 0'], o.xg[0]: [f's_cmp_gt_u32 s{SCNT}, s86', f's_cselect_b32 s{SX+2}, s{SX+2}, 0'],
            o.xg[1]: [f'buffer_load_dword v46, v43, {s(SX,4)}, s80 offen'], o.xg[3]: [f's_min_u32 s42, s{SX+2}, s88', 's_add_u32 s80, s80, s42']}
    x_z = {o.xg[0]: [f's_cmp_le_u32 s{SCNT}, {o.prepass}', f's_cselect_b32 s{SO+2}, 16384, 0'],
           o.xg[1]: [f'buffer_load_dword v2, v47, {s(SO,4)}, s41 offen'], o.xg[3]: [f's_lshr_b32 s42, s{SO+2}, 3', 's_add_u32 s41, s41, s42']}
    A(f's_mov_b32 s{SCNT}, 15')
    A('s_mov_b32 s41, 0')
    A('v_lshlrev_b32 v47, 5, v0')
    es(A, 0, o, 'p0', no_pv=True, check=False, first=True, vread_on=False, vmn=9, extra=x_pf)
    es(A, 1, o, 'p1', zero_o=True, vmn=10, extra=x_z); rare.append((1, 'p1'))
    A(f's_branch L_mid_{name}')
    A('.p2align 6')
    A(f'L_loop_{name}:')
    n0 = len(A.lines)
    vmn = {0: 12, 1: 11, 2: 12, 3: 12}
    for t in range(4):
        if t == 2: A(f'L_mid_{name}:')
        tail = [f's_sub_u32 s{SCNT}, s{SCNT}, 1'] if t == 3 else []
        es(A, t, o, f'l{t}', tail=tail, vmn=vmn[t], extra={2: x_wo, 0: x_pf, 1: x_z, 3: x_z}[t])
        rare.append((t, f'l{t}'))
    if o.drop:
        import re
        A.lines[n0:] = [l for l in A.lines[n0:] if not re.search(o.drop, l)]
    A(f's_cmp_lg_u32 s{SCNT}, 0')
    A(f's_cbranch_scc1 L_loop_{name}')
    def wo_tail(c0):
        seq = []
        for c in (c0, c0+1):
            seq.append(['s_add_u32 s49, s49, 1', 's_and_b32 s49, s49, 15', f's_add_u32 m0, s48, {lds_o(c)}', 's_lshl_b32 s43, s49, 15', wo_dma(0)])
            seq.append([wo_dma(1)])
        return seq
    YA = [4, 5, 6, 7, 16, 17, 18, 19]
    XA = list(range(8, 16))
    T = Asm(); img_read_addr(T, VTMP+3, 0, 32768)
    import re
    ysetup = [re.sub(r'^v_lshl_add_u32 v(\d), ', lambda m: f'v_lshl_add_u32 v{YA[int(m.group(1))]}, ', l.strip()) for l in T.lines]
    es(A, 0, o, 'e0', vmn=11, extra={0: [f's_mov_b32 s{SO+2}, 16384']}); rare.append((0, 'e0'))
    es(A, 1, o, 'e1', vmn=9, dma_alt=wo_tail(12)); rare.append((1, 'e1'))
    es(A, 2, o, 'e2', vmn=8, dma_alt=wo_tail(14), kread_on=False); rare.append((2, 'e2'))
    es(A, 3, o, 'e3', vmn=8, no_qk=True, dma_on=False, kread_on=False, extra={55: ysetup[:8], 57: ysetup[8:16], 59: ysetup[16:]}); rare.append((3, 'e3'))
    st('loop_end')
    OWN = lambda m, qb: VQ + (m*4+qb)*4
    wfa = lambda b, k, n, off=0: a(192 + (b*8+k)*4 + off, n)
    def waddr(c, nt):
        x = lds_o(c)
        return (YA[nt], x - 32768) if x < 98304 else (XA[nt], x - 98304)
    def ureads(u, frs):
        return [f'ds_read_b64_tr_b16 {wfa(u&1,k,2,2*j2)}, v{waddr(c,nt)[0]} offset:{waddr(c,nt)[1] + j2*4096}' for k, (c, nt) in enumerate(frs) for j2 in range(2)]
    units = [[(c, nt) for nt in range(8)] for c in range(8)]
    for m in range(4):
        for gb in (8, 12):
            units.append([(c, nt) for nt in (2*m, 2*m+1) for c in range(gb, gb+4)])
    for dt in range(8):
        for j2 in range(2): A(a16.vread(dt, j2, 1))
    for qb in range(4): A(f'v_rcp_f32 v{VT+2*qb}, v{L(1,qb)}')
    for qb in range(4): A(f'v_mov_b32 v{VT+2*qb+1}, v{VT+2*qb}')
    def opack(fl):
        pv = a16.pv_list(1, o)
        def pk(m):
            L_ = [f's_mov_b32 s44, {m*4096}']
            for qb in range(4):
                b = VS + ((m*4+qb) % 8) * 8
                L_ += [f'v_accvgpr_read_b32 v{b+r}, a{O(qb,2*m)+r}' for r in range(8)]
                if m < 2: L_ += [f'v_mul_f32 v{b+r}, v{b+r}, v{VT+2*qb}' for r in range(8)]
                else: L_ += [f'v_pk_mul_f32 {v(b+r,2)}, {v(b+r,2)}, {v(VT+2*qb,2)}' for r in range(0, 8, 2)]
                L_ += [f'v_cvt_pk_bf16_f32 v{OWN(m,qb)+r//2}, v{b+r}, v{b+r+1}' for r in range(0, 8, 2)]
                L_.append(f'buffer_store_dwordx4 {v(OWN(m,qb),4)}, v{VL16}, {s(SO,4)}, s44 offen offset:{qb*1024} {fl}')
            return L_
        A('s_waitcnt lgkmcnt(8)')
        rd = ureads(0, units[0])
        for g in range(16):
            if g == 15: A('s_waitcnt lgkmcnt(0)')
            A(pv[g])
        seq = pk(0) + pk(1)
        k = 0
        for g in range(16, 32):
            A(pv[g]); A(rd[g-16])
            for _ in range(5): A(seq[k]); k += 1
        A.ext(seq[k:]); A.ext(pk(2)); A.ext(pk(3))
    A('s_cmp_eq_u32 s91, 0')
    A(f's_cbranch_scc1 L_ofar_{name}')
    opack(o.ostore)
    A(f'L_oback_{name}:')
    st('o_stored')
    vm = VM()
    sf = lambda c, qb: ((c-4)*4+qb)*4
    bop = lambda c, qb: v(OWN(c,qb),4) if c < 4 else a(sf(c,qb),4)
    none = lambda c: []
    A(f"""
    s_lshl_b32 s40, s57, 3
    s_add_u32 s40, s40, s58
    s_lshl_b32 s80, s40, 10
    s_lshl_b32 s40, s40, 7
    s_add_u32 s77, s40, {CTR + 256*128 + K_H}
    """)
    gw = f'''s_lshl_b32 s42, s83, 17
    s_add_u32 s42, s42, s48
    s_add_u32 s42, s42, {GI_OFF}
    s_add_u32 s{SW}, s72, s42
    s_addc_u32 s{SW+1}, s73, 0
    s_mov_b32 s{SW+2}, {131072 - 6144}''' if o.relay else f'''s_cmp_ge_u32 s15, 2
    s_cselect_b32 s40, s66, s64
    s_cselect_b32 s41, s67, s65
    s_lshl_b32 s42, s83, 7
    s_add_u32 s{SW}, s40, s42
    s_addc_u32 s{SW+1}, s41, 0
    s_sub_u32 s{SW+2}, {512*2752}, s42'''
    gsetup = f"""
    s_cmp_lt_u32 s78, 31
    s_cselect_b32 s82, 0, 5
    s_cmp_lt_u32 s79, 242
    s_cselect_b32 s82, s82, 5
    s_min_u32 s79, s79, 241
    s_mul_i32 s83, s79, 745
    s_lshr_b32 s83, s83, 13
    s_mul_i32 s84, s83, 11
    s_sub_u32 s84, s79, s84
    {gw}
    s_and_b32 s{SW+1}, s{SW+1}, 0xffff
    s_mov_b32 s{SW+3}, 0x20000
    s_mul_i32 s85, s79, {o.rotg[0]}
    s_mul_i32 s40, s84, {o.rotg[1]}
    s_add_u32 s85, s85, s40
    s_mul_i32 s40, s58, {o.rotg[2]}
    s_add_u32 s85, s85, s40
    s_and_b32 s85, s85, 15
    s_mov_b32 s49, s85
    s_lshl_b32 s50, s14, 2
    s_add_u32 s50, s50, 4
    s_and_b32 s50, s50, 15
    s_lshl_b32 s40, s58, 21
    s_lshl_b32 s41, s59, 16
    s_add_u32 s40, s40, s41
    s_lshl_b32 s41, s14, 14
    s_add_u32 s40, s40, s41
    """
    T = Asm(); T(gsetup); srd_at(T, SO, 72, 40, PART_OFF, 16384)
    if o.relay:
        T(f'v_mov_b32 v44, v{VL16}'); T(f'v_mov_b32 v45, v{VL16}')
    else:
        himg_dma_off(T, VTMP, 44, 2752)
        T(f'''
        s_and_b32 s40, s15, 1
        s_mul_i32 s40, s40, {16*2752}
        v_add_u32 v44, s40, v44
        v_add_u32 v45, {8*2752-1024}, v44
        ''')
    for k in range(8): T(f'v_add_u32 v{XA[k]}, 0x10000, v{YA[k]}')
    setup0 = [l.strip() for l in T.lines]
    iact = mk_act(4, SA, [VL16]*4, [0,1024,2048,3072], 50, 44, sf, o.oload)
    def iwg(c):
        return [(f's_add_u32 m0, s48, {lds_g(c)}', None), (f's_mul_i32 s43, s49, {8192 if o.relay else 32*2752}', None),
                (f'buffer_load_dwordx4 v44, {s(SW,4)}, s43 offen {o.wflags} lds', ('g', c)),
                ('s_add_u32 s49, s49, 1', None), ('s_and_b32 s49, s49, 15', None),
                (f'buffer_load_dwordx4 v45, {s(SW,4)}, s43 offen offset:1024 {o.wflags} lds', ('g', c))]
    def ppack(m):
        L_ = [f's_mov_b32 s42, {m*4096}']
        for qb in range(4):
            pk = VQ + (m*4+qb)*4; b = QACC(qb, 2*m)
            L_ += [f'v_cvt_pk_bf16_f32 v{pk+r//2}, v{b+r}, v{b+r+1}' for r in range(0, 8, 2)]
            L_.append((f'buffer_store_dwordx4 {v(pk,4)}, v{VL16}, {s(SO,4)}, s42 offen offset:{qb*1024} sc1', ('s', 0)))
        return L_
    nx = 4; ng = 0
    for u, frs in enumerate(units):
        if u == o.osig:
            signal(A, 77, 0, nrep=1); st('o_signal')
        if u == o.owait:
            wait_ctr(A, 77, 4, 1); st('o_ready')
        cmax = max(c for c, _ in frs)
        n = vm.need(lambda x: x[0] == 'a' and x[1] <= cmax)
        A(f's_waitcnt vmcnt({n}) lgkmcnt(0)' if n is not None else 's_waitcnt lgkmcnt(0)')
        if u == 8: A('s_barrier')
        if o.fine == 'o': st(f'u{u}')
        if u < 8: order = [(k, qb) for k in range(8) for qb in range(4)]
        else: order = [(h*4+k, qb) for h in range(2) for qb in range(4) for k in range(4)]
        mf = [f'{MF} {v(QACC(qb,frs[k][1]),4)}, {wfa(u&1,k,4)}, {bop(frs[k][0],qb)}, {"0" if u == 0 else v(QACC(qb,frs[k][1]),4)}' for k, qb in order]
        rd = ureads(u+1, units[u+1]) if u + 1 < len(units) else []
        g = []; valu = []
        if u >= o.owait:
            for _ in range(o.orate):
                if nx < 16: g += iact(nx); nx += 1
        if u == 0: valu = setup0
        if nx == 16 and not g:
            for _ in range(o.grate[u & 1]):
                if ng < (4 if u < 8 else 12): g += iwg(ng); ng += 1
        if u >= 10 and (u & 1) == 0: valu = ppack((u - 10)//2)
        place(A, vm, mf, rd, g, valu, valu_from=(6 if u >= 10 else 0))
    assert nx == 16 and ng == 12, (nx, ng)
    st('oproj')
    A('s_nop 5')
    E([x if isinstance(x, tuple) else (x, None) for x in ppack(3)])
    row8_addrs(A, 4, 7, 8, 9)
    A('v_lshlrev_b32 v10, 5, v21')
    A('s_lshl_b32 s40, s2, 13')
    srd_at(A, SX, 4, 40, 0, 8192)
    for k in range(4):
        E([(f's_mov_b32 s42, {MODP + k*12288 + 4096}', None),
           (f'buffer_load_dwordx4 {v(112+8*k,4)}, v10, {s(SF,4)}, s42 offen', ('m', 0)),
           (f'buffer_load_dwordx4 {v(116+8*k,4)}, v10, {s(SF,4)}, s42 offen offset:16', ('m', 0))])
    for p in range(2):
        for j in range(2):
            E([(f'buffer_load_dwordx2 {v(12+p*4+j*2,2)}, v7, {s(SX,4)}, 0 offen offset:{p*512+j*32}', ('x', 0))])
    A(f's_add_u32 s77, s80, {CTR + K_P}')
    signal(A, 77, vm.need(lambda x: x[0] == 's'))
    st('p_signal')
    srd_at(A, SA, 72, 74, PART_OFF, (14 << 20) + 65536)
    srd_at(A, SX, 72, 74, X1_OFF, 65536)
    srd_at(A, SO, 72, 74, H2_OFF, 65536)
    A('s_waitcnt vmcnt(4)')
    for j in range(8):
        A(f'v_add_f32 v{112+j}, v{112+j}, v{120+j}')
        A(f'v_add_f32 v{128+j}, v{128+j}, v{136+j}')
    for j in range(8): A(f'v_add_f32 v{112+j}, v{112+j}, v{128+j}')
    for j in range(4): A(f'v_cvt_pk_bf16_f32 v{120+j}, v{112+2*j}, v{113+2*j}')
    unpack8(A, 120, 112)
    A(f'''
    s_cmp_eq_u32 s15, 2
    s_cselect_b32 s40, 1.0, 0
    ''')
    for j in range(8): A(f'v_add_f32 v{112+j}, s40, v{112+j}')
    A(f'''
    ds_write_b128 v10, v[112:115] offset:{RSC}
    ds_write_b128 v10, v[116:119] offset:{RSC+16}
    s_lshl_b32 s77, s57, 13
    s_add_u32 s77, s77, s45
    s_add_u32 s77, s77, {CTR + K_P}
    s_waitcnt vmcnt(0)
    ''')
    unpack8(A, 12, 176); unpack8(A, 16, 184)
    A('s_cmp_eq_u32 s15, 0')
    A(f's_cbranch_scc1 L_g1_{name}')
    for c in range(12, 16): A.ext([x for x, _ in iwg(c)])
    A(f'L_g1_{name}:')
    wait_ctr(A, 77, 4, 8, pre_bar='s_waitcnt lgkmcnt(0)')
    st('p_ready')
    for sp in range(8):
        A(f's_mov_b32 s42, {sp << 21}')
        A(f's_mov_b32 s43, {(sp << 21) + 32768}')
        for p in range(2):
            A(f'buffer_load_dwordx4 {v(48+(sp*2+p)*4,4)}, v8, {s(SA,4)}, s{42+p} offen sc1')
    A('s_cmp_lg_u32 s15, 0')
    A(f's_cbranch_scc1 L_g0_{name}')
    for c in range(12, 16): A.ext([x for x, _ in iwg(c)])
    A(f'L_g0_{name}:')
    for vec, base in ((0, 192), (2, 208), (1, 224)):
        for p in range(2):
            for j in range(2):
                A(f'ds_read_b128 {v(base+p*8+j*4,4)}, v9 offset:{RSC + vec*2048 + p*1024 + j*64}')
    A(f'''
    s_lshl_b32 s86, s58, 2
    s_lshr_b32 s87, s2, 6
    s_add_u32 s86, s86, s87
    s_bfe_u32 s87, s2, 0x30003
    v_mov_b32 v128, 0x3f80
    v_mov_b32 v129, 0x3f800000
    ''')
    for sp in range(8):
        for p in range(2):
            A(f's_waitcnt vmcnt({15 - sp*2 - p})')
            if sp == 0: unpack8(A, 48+p*4, 112+p*8)
            else:
                for j in range(8): A(f'v_dot2c_f32_bf16 v{112+p*8+j}, v{48+(sp*2+p)*4+j//2}, v{128+(j&1)}')
    A('s_waitcnt lgkmcnt(0)')
    for j in range(16): A(f'v_fmac_f32 v{176+j}, v{192+j}, v{112+j}')
    for j in range(8): A(f'v_cvt_pk_bf16_f32 v{12+j}, v{176+2*j}, v{177+2*j}')
    row_stats_write(A, 12, 136, 4, RSC+8192)
    vm = VM()
    for p in range(2):
        E([(f'buffer_store_dwordx4 {v(12+p*4,4)}, v8, {s(SX,4)}, {"s75" if p else "0"} offen sc1', ('s', 0))])
    A(f'''
    v_lshlrev_b32 v136, 5, v4
    s_waitcnt lgkmcnt(0)
    s_barrier
    ds_read_b128 v[140:143], v136 offset:{RSC+8192}
    ds_read_b128 v[144:147], v136 offset:{RSC+8208}
    ''')
    unpack8(A, 12, 176); unpack8(A, 16, 184)
    A('s_waitcnt lgkmcnt(0)')
    row_stats_finish(A, 140, 148, 149)
    for p in range(2):
        for j in range(8): A(f'v_fma_f32 v{176+p*8+j}, v{176+p*8+j}, v149, -v148')
        for j in range(8): A(f'v_fmac_f32 v{224+p*8+j}, v{176+p*8+j}, v{208+p*8+j}')
        for j in range(4): A(f'v_cvt_pk_bf16_f32 v{112+p*4+j}, v{224+p*8+2*j}, v{225+p*8+2*j}')
        E([(f'buffer_store_dwordx4 {v(112+p*4,4)}, v8, {s(SO,4)}, {"s75" if p else "0"} offen sc1', ('s', 0))])
    st('h2_stored')
    A(f's_add_u32 s77, s76, {CTR + K_2}')
    GA = list(range(240, 248)); GB = list(range(248, 256))
    himg_read_addr(A, VTMP, GA[0], 0)
    signal(A, 77, 0)
    st('h2_signal')
    def lds_d(k): return lds_g(2*k) if k < 8 else (32768 + (k-8)*16384 if k < 10 else lds_g(0))
    def iwd(k):
        L_ = [(f's_add_u32 m0, s{SM0}, {lds_d(k)}', None), (f's_add_u32 s43, s88, {k*32*1024}', None)]
        return L_ + [(f'buffer_load_dwordx4 v{44+p}, {s(SW,4)}, s43 offen offset:{p*1024} {o.wflags} lds', ('d', k)) for p in range(4)]
    wfg = lambda b, k, n, off=0: v(48 + (b*8+k)*4 + off, n)
    def gaddr(c, nt):
        x = lds_g(c)
        if x < 65536: return GA[nt], x
        if x < 131072: return GB[nt], x - 65536
        return GA[nt], x - 131072
    def greads(u, frs):
        return [f'ds_read_b64_tr_b16 {wfg(u&1,k,2,2*j2)}, v{gaddr(c,nt)[0]} offset:{gaddr(c,nt)[1] + j2*2048}' for k, (c, nt) in enumerate(frs) for j2 in range(2)]
    gunits = [[(c, nt) for nt in range(8)] for c in range(12)]
    for pr in ((0, 1), (4, 5), (2, 3), (6, 7)):
        gunits.append([(c, nt) for nt in pr for c in range(12, 16)])
    if o.gchain:
        gunits = gunits[:4]
        for gb_ in (4, 8, 12):
            for pr in ((0, 1), (4, 5), (2, 3), (6, 7)):
                gunits.append([(c, nt) for nt in pr for c in range(gb_, gb_+4)])
    A.ext(greads(0, gunits[0]))
    A(f"""
    s_lshl_b32 s89, s84, 2
    s_add_u32 s89, s89, s15
    s_mul_i32 s89, s89, 3
    s_mul_i32 s77, s84, 3072
    s_add_u32 s77, s77, s45
    s_add_u32 s77, s77, {CTR + K_2}
    s_cmp_eq_u32 s84, 10
    s_cselect_b32 s41, 1, 2
    s_mov_b32 s50, s85
    """)
    for qb in range(3):
        A(f's_add_u32 s42, s89, {qb}')
        fragaddr_s(A, 40, 42, 16, 43)
        A(f'v_add_u32 v{4+qb}, s40, v{VL16}')
    srd_at(A, SA, 72, None, H2_OFF, 2 << 20)
    wait_ctr(A, 77, 8, 3, clamp='s41')
    st('h2_ready')
    vm = VM()
    gf = lambda c, qb: (c*3+qb)*4
    gacc = lambda qb, nt: 112 + (qb*8+nt)*4
    iact = mk_act(3, SA, [4,5,6], [0,0,0], 50, 44, gf, 'sc1')
    for c in range(D0): E(iact(c))
    for k in range(8): A(f'v_add_u32 v{GB[k]}, 0x10000, v{GA[k]}')
    for qb in range(3):
        A(f"""
        s_add_u32 s42, s89, {qb}
        s_lshr_b32 s40, s42, 2
        s_mul_i32 s40, s40, {43*4096}
        s_and_b32 s42, s42, 3
        s_lshl_b32 s42, s42, 10
        s_add_u32 s40, s40, s42
        s_lshl_b32 s42, s83, 13
        s_add_u32 s40, s40, s42
        v_add_u32 v{8+qb}, s40, v{VL16}
        """)
    srd_at(A, SO, 72, None, A_OFF, 128*43*1024)
    A(f's_cmp_eq_u32 s82, 0')
    A(f's_cselect_b32 s{SO+2}, s{SO+2}, 0')
    himg_dma_off(A, VTMP, 44, 1024)
    DA = list(range(224, 228)); DB = list(range(228, 232)); DC = list(range(232, 236))
    A(f"""
    v_add_u32 v45, {8192-1024}, v44
    v_add_u32 v46, {2*(8192-1024)}, v44
    v_add_u32 v47, {3*(8192-1024)}, v44
    s_lshl_b32 s42, s87, 7
    s_add_u32 s{SW}, s68, s42
    s_addc_u32 s{SW+1}, s69, 0
    s_sub_u32 s{SW+2}, {1376*1024}, s42
    s_and_b32 s{SW+1}, s{SW+1}, 0xffff
    s_mov_b32 s{SW+3}, 0x20000
    s_mul_i32 s88, s15, {11*32*1024}
    v_lshrrev_b32 v12, 4, v0
    s_lshl_b32 s40, s87, 8
    v_lshl_add_u32 v13, v12, 4, s40
    """)
    for nt in range(4): A(f'ds_read_b128 {v(208+4*nt,4)}, v13 offset:{RSC + 6144 + nt*64}')
    T = Asm()
    for k in range(4):
        T(f'v_mov_b32 v{DA[k]}, v{GA[k]}'); T(f'v_mov_b32 v{DB[k]}, v{GB[k]}'); T(f'v_add_u32 v{DC[k]}, 0x20000, v{GA[k]}')
    T(f"""
    v_and_b32 v14, 15, v0
    v_lshlrev_b32 v14, 10, v14
    v_lshl_add_u32 v14, v12, 4, v14
    s_lshl_b32 s77, s84, 2
    s_and_b32 s40, s83, 3
    s_add_u32 s77, s77, s40
    s_lshl_b32 s77, s77, 10
    s_add_u32 s77, s77, {CTR + K_A}
    s_mul_i32 s40, s86, 43
    s_lshr_b32 s40, s40, 7
    s_lshl_b32 s78, s40, 12
    s_add_u32 s78, s78, s45
    s_add_u32 s78, s78, {CTR + K_A}
    v_lshrrev_b32 v15, 1, v0
    v_sub_u32 v15, 6, v15
    """)
    dsetup = [l.strip() for l in T.lines]
    def apack(m):
        L_ = []
        for qb in range(3):
            b = gacc(qb, 2*m); pk = 24 + qb*4
            L_ += [f'v_mul_f32 v{b+r}, v{b+r}, v{b+16+r}' for r in range(8)]
            L_ += [f'v_cvt_pk_bf16_f32 v{pk+r//2 if m == 0 else b+16+r//2}, v{b+r}, v{b+r+1}' for r in range(0, 8, 2)]
            L_.append((f'buffer_store_dwordx4 {v(pk if m == 0 else b+16,4)}, v{8+qb}, {s(SO,4)}, {"s44" if m else "0"} offen sc1', ('s', 0)))
        return L_
    nx = D0; dq = [0, 1, 8, 9, 2, 3, 4, 5]
    for u, frs in enumerate(gunits):
        cmax = max(c for c, _ in frs)
        n = vm.need(lambda x: x[0] == 'a' and x[1] <= cmax)
        A(f's_waitcnt vmcnt({n}) lgkmcnt(0)')
        later = set(c for f2 in gunits[u+1:] for c, _ in f2)
        g = []
        for _ in range(o.grate2):
            if nx < 16: g += iact(nx); nx += 1
        if not g:
            for _ in range(2 if u < 12 else 1):
                if dq and (dq[0] >= 8 or (2*dq[0] not in later and 2*dq[0]+1 not in later)): g += iwd(dq.pop(0))
            if g: A('s_barrier')
        if o.fine == 'g': st(f'g{u}')
        chain = len(set(c for c, _ in frs)) > 1
        order = [(h*4+k, qb) for h in range(2) for qb in range(3) for k in range(4)] if chain else [(k, qb) for k in range(8) for qb in range(3)]
        mf = [f'{MF} {v(gacc(qb,frs[k][1]),4)}, {wfg(u&1,k,4)}, {a(gf(frs[k][0],qb),4)}, {"0" if u == 0 else v(gacc(qb,frs[k][1]),4)}' for k, qb in order]
        rd = greads(u+1, gunits[u+1]) if u + 1 < len(gunits) else []
        valu = []
        if u == 2: valu = dsetup[:14]
        if u == 3: valu = dsetup[14:]
        if u == 6: valu = [f'v_add_u32 v{GA[k]}, 0x20000, v{GA[k]}' for k in range(8)]
        ap = apack(0)
        if u == 14: valu = ap[:13]
        if u == 15: valu = ap[13:]
        place(A, vm, mf, rd, g, valu, valu_from=(8 if u == 14 else 0))
    assert nx == 16 and not dq, dq
    st('glu')
    A('s_movk_i32 s44, 4096')
    A('s_cmp_eq_u32 s83, 21')
    A(f's_cbranch_scc1 L_skipa_{name}')
    A('s_nop 3')
    A.ext([x[0] if isinstance(x, tuple) else x for x in apack(1)])
    A(f'L_skipa_{name}:')
    signal(A, 77, 0, cond='s82')
    st('a_signal')
    dord = [0, 1, 8, 9, 2, 3, 4, 5, 6, 7, 10]
    wfd = lambda b, k, n, off=0: v(48 + (b*16+k)*4 + off, n)
    def daddr(k, wq, nt):
        x = lds_d(k) + wq*4096
        return ((DA, DB, DC)[x >> 16][nt], x & 65535)
    def dreads(u):
        k = dord[u]
        return [f'ds_read_b64_tr_b16 {wfd(u&1,nt*4+wq,2,2*j2)}, v{daddr(k,wq,nt)[0]} offset:{daddr(k,wq,nt)[1] + j2*2048}'
                for nt in range(4) for wq in range(4 if k < 10 else 3) for j2 in range(2)]
    vm = VM()
    A('s_cmp_eq_u32 s15, 0')
    A(f's_cbranch_scc1 L_d1_{name}')
    A.ext([x for x, _ in iwd(6) + iwd(7)])
    A(f'L_d1_{name}:')
    A.ext(dreads(0))
    A(f"""
    s_mul_i32 s40, s86, {43*4096}
    s_lshl_b32 s41, s15, 10
    s_add_u32 s40, s40, s41
    """)
    srd_at(A, SA, 72, 40, A_OFF, 43*4096)
    A(f"""
    s_lshl_b32 s40, s86, 16
    s_lshl_b32 s41, s87, 7
    s_add_u32 s40, s40, s41
    s_lshl_b32 s41, s15, 14
    s_add_u32 s40, s40, s41
    """)
    srd_at(A, SO, 70, 40, 0, 15*1024 + 128)
    A(f"""
    s_lshl_b32 s40, s86, 16
    s_lshl_b32 s41, s87, 13
    s_add_u32 s40, s40, s41
    s_lshl_b32 s41, s15, 10
    s_add_u32 s40, s40, s41
    """)
    srd_at(A, SX, 72, 40, X1_OFF, 8192)
    wait_ctr(A, 78, 'v15', 4, pre_bar='s_waitcnt lgkmcnt(0)')
    st('a_ready')
    df = lambda u, wq: (u*4+wq)*4
    dacc = lambda nt: 176 + nt*4
    def iad(u):
        k = dord[u]; L_ = []
        for wq in range(4 if k < 10 else 3):
            L_ += [(f's_mov_b32 s44, {(11*wq+k)*4096}', None), (f'buffer_load_dwordx4 {a(df(u,wq),4)}, v{VL16}, {s(SA,4)}, s44 offen sc1', ('a', u))]
        return L_
    for u in range(o.dD0): E(iad(u))
    A('s_cmp_lg_u32 s15, 0')
    A(f's_cbranch_scc1 L_d0_{name}')
    A.ext([x for x, _ in iwd(6) + iwd(7)])
    A(f'L_d0_{name}:')
    nx = o.dD0
    for u in range(11):
        k = dord[u]; nw_ = 4 if k < 10 else 3
        n = vm.need(lambda x: (x[0] == 'a' and x[1] <= u) or (x[0] == 'd' and u >= 7))
        A(f's_waitcnt vmcnt({n}) lgkmcnt(0)')
        if u == 7: A('s_barrier')
        if o.fine == 'g': st(f'd{u}')
        g = []
        for _ in range(2):
            if nx < 11: g += iad(nx); nx += 1
        if u == 1: g += iwd(10)
        if u == 5: g += [('s_movk_i32 s44, 4096', None), (f'buffer_load_dwordx4 v[4:7], v{VL16}, {s(SX,4)}, 0 offen sc1', ('x', 0)),
                         (f'buffer_load_dwordx4 v[8:11], v{VL16}, {s(SX,4)}, s44 offen sc1', ('x', 0))]
        mf = [f'{MF} {v(dacc(nt),4)}, {wfd(u&1,nt*4+wq,4)}, {a(df(u,wq),4)}, {"0" if (u == 0 and wq == 0) else v(dacc(nt),4)}' for nt in range(4) for wq in range(nw_)]
        rd = dreads(u+1) if u + 1 < 11 else []
        units_ = units_of(g)
        for gi, m_ in enumerate(mf):
            A(m_)
            lo, hi = (gi*len(rd))//max(1, len(mf)-3), ((gi+1)*len(rd))//max(1, len(mf)-3)
            A.ext(rd[lo:hi])
            if gi < len(units_): E(units_[gi])
            if u == 10 and gi == 0:
                A('s_waitcnt vmcnt(0)')
                unpack8(A, 4, 24); unpack8(A, 8, 192)
    st('down')
    A('s_nop 4')
    for m in range(2):
        xb = 24 if m == 0 else 192
        for j in range(8): A(f'v_fmac_f32 v{xb+j}, v{208+8*m+j}, v{dacc(2*m)+j}')
        for j in range(4): A(f'v_cvt_pk_bf16_f32 v{4+4*m+j}, v{xb+2*j}, v{xb+2*j+1}')
    for k in (32, 16):
        for m in range(2):
            for r in range(2): A(f'v_permlane{k}_swap_b32 v{4+4*m+r}, v{4+4*m+2+r}')
    for m in range(2):
        A(f'buffer_store_dwordx4 {v(4+4*m,4)}, v14, {s(SO,4)}, 0 offen offset:{m*64} {o.outflags}')
    if o.timing: A('s_waitcnt vmcnt(0)')
    st('end')
    st.dump(1, 72)
    A(f'L_end_{name}:')
    A('s_endpgm')
    A('L_hot_end:')
    A(f'L_ofar_{name}:')
    opack('sc1')
    A(f's_branch L_oback_{name}')
    for (t, tag) in rare:
        A(f'L_rare_{tag}:')
        A(f's_call_b64 s[46:47], L_raresub{t&1}_{name}')
        A(f's_branch L_back_{tag}')
    emit_rare_sub(A, 0, name)
    emit_rare_sub(A, 1, name)
    return (name, 256, 256, 163840, 512, 100, 256), st.names
```

```python
import sys, json
from c16 import *
import fz
from gen16 import default_pat
class Opt:
    timing = False
    drop = None
    wflags = ''; kvflags = 'nt'; outflags = 'sc1'
    order = 't'; qkorder = 'chain'; pvorder = 'dt'
    pat = None
    wqA = 3; wqB = 8; qact = (2,2,1,1,1,1,1,1,1,2,1); qw0 = 1; gchain = False; grate2 = 2; dD0 = 2
    actD0 = 2; actD = 3
    rot = (0, 1, 2); rotg = (0, 1, 2); sleep = 0; local = True; prepass = 5; pfd = 'mall'; pfs = (4, 12); relay = False; fine = None; grate = (1, 2); owait = 2; orate = 2; oload = 'sc1'; ostore = ''
    osig = 1; dlate = 4
    xg = (20, 22, 25, 23, 24, 26)
def build(o):
    if o.pat is None: o.pat = default_pat()
    A = Asm()
    A('.amdgcn_target "amdgcn-amd-amdhsa--gfx950"')
    A('.text')
    ks = []; names = {}
    for n, g in [('mod_kernel', fz.gen_mod), ('main_kernel', fz.gen_main)]:
        n0 = len(A.lines)
        k, nm = g(A, n, o); ks.append(k); names[n] = nm
        kd = getattr(o, 'kdrop', None)
        if kd and n.startswith(kd[0]):
            import re
            A.lines[n0:] = [l for l in A.lines[n0:] if not re.search(kd[1], l)]
    txt = HEADER
    if o.timing: txt += '; STAMPS ' + json.dumps(names) + '\n'
    for (n, grid, blk, lds, nv, ns, acc) in ks:
        txt += f'; @launch kernel={n} grid=({grid},1,1) block=({blk},1,1) lds={lds}\n'
    txt += A.text() + '.section .rodata,"a"\n'
    for (n, grid, blk, lds, nv, ns, acc) in ks:
        txt += '.p2align 6\n' + kernel_desc(n, nv, ns, acc)
    return txt
if __name__ == '__main__':
    o = Opt()
    for kv in sys.argv[2:]:
        k, val = kv.split('=', 1)
        setattr(o, k, eval(val))
    open(sys.argv[1], 'w').write(build(o))
```

```python
from c16 import *
import a16
from a16 import (VKADDR, VVADDR, VKDMA, VVDMA, VL16, VONE, VT, VTMP, VQ, VS, VP, Q, S, P, NM, L, QACC, O, KF, VF,
                 SK, SV, SOFF, SM0, SCNT, STHR, OFFS, THR, kread, dma, qk_list, emit_rowmax, emit_rare_sub)
from k16 import code_srd, fragaddr_s

MODP = 0x4000
CTR = 0x20000
K_H, K_2, K_P, K_A = 0, 4, 8, 12
NLINE = 512
XT = CTR + NLINE*128
SW, SA, SO, SF, SX, SWO = 24, 28, 32, 52, 60, 96
GI_OFF = 0x3000000
VST = 22

class St:
    def __init__(self, A, o): self.A, self.o, self.n, self.names = A, o, 0, []
    def __call__(self, name):
        if not self.o.timing: return
        A = self.A
        A('s_memtime s[92:93]'); A('s_memrealtime s[94:95]'); A('s_waitcnt lgkmcnt(0)')
        A(f'v_writelane_b32 v{VST}, s94, {self.n}'); A(f'v_writelane_b32 v{VST+1}, s92, {self.n}')
        self.n += 1; self.names.append(name)
    def dump(self, kidx, ws):
        if not self.o.timing: return
        self.A(f'''
        s_lshl_b32 s92, s2, 2
        s_add_u32 s92, s92, s15
        s_lshl_b32 s92, s92, 9
        s_add_u32 s92, s92, {DBG_OFF + kidx*0x100000}
        s_add_u32 s92, s{ws}, s92
        s_addc_u32 s93, s{ws+1}, 0
        s_and_b32 s93, s93, 0xffff
        s_mov_b32 s94, 512
        s_mov_b32 s95, 0x20000
        v_lshlrev_b32 v1, 3, v0
        buffer_store_dwordx2 v[{VST}:{VST+1}], v1, s[92:95], 0 offen
        ''')

def srd_at(A, d, base, off_s, imm, nrec):
    if off_s is not None and imm:
        A(f's_add_u32 s{d}, s{off_s}, {imm}'); A(f's_add_u32 s{d}, s{base}, s{d}')
    elif off_s is not None: A(f's_add_u32 s{d}, s{base}, s{off_s}')
    else: A(f's_add_u32 s{d}, s{base}, {imm}')
    A(f's_addc_u32 s{d+1}, s{base+1}, 0')
    srd(A, d, f's{d}', f's{d+1}', nrec)

def gen_mod(A, name, o):
    kernel_begin(A, name)
    st = St(A, o)
    A(f'''
    s_cmp_ge_u32 s2, 256
    s_cbranch_scc1 L_end_{name}
    s_load_dwordx8 s[4:11], s[0:1], 0
    s_load_dwordx4 s[16:19], s[0:1], 72
    s_load_dwordx2 s[12:13], s[0:1], 104
    s_load_dwordx4 s[48:51], s[0:1], 48
    v_lshrrev_b32 v1, 6, v0
    v_and_b32 v0, 63, v0
    v_readfirstlane_b32 s15, v1
    v_lshlrev_b32 v5, 4, v0
    s_and_b32 s33, s2, 7
    s_lshr_b32 s34, s2, 3
    ''')
    st('start')
    A(f'''
    s_cmp_lg_u32 s15, 0
    s_cbranch_scc1 L_pf_{name}
    s_cmp_ge_u32 s2, 192
    s_cbranch_scc1 L_zero_{name}
    ''')
    himg_dma_off(A, 6, 3, 6144)
    A(f'''
    v_add_u32 v4, {8*6144-1024}, v3
    v_add_u32 v6, {2*(8*6144-1024)}, v3
    v_add_u32 v7, {3*(8*6144-1024)}, v3
    s_and_b32 s36, s2, 3
    s_lshr_b32 s37, s2, 2
    s_mul_i32 s39, s36, {128*6144}
    s_lshl_b32 s40, s37, 7
    s_add_u32 s39, s39, s40
    s_lshl_b32 s40, s36, 8
    v_lshl_add_u32 v2, v0, 2, s40
    s_waitcnt lgkmcnt(0)
    ''')
    srd(A, 20, 's16', 's17', 1024)
    srd(A, 24, 's18', 's19', 512*6144)
    A('buffer_load_dword v8, v2, s[20:23], 0 offen')
    for ks in range(4):
        A(f's_mov_b32 m0, {ks*4096}')
        if ks: A(f's_add_u32 s39, s39, {32*6144}')
        else: A('s_nop 0')
        for p, r in enumerate((3, 4, 6, 7)):
            A(f'buffer_load_dwordx4 v{r}, s[24:27], s39 offen offset:{p*1024} lds')
    himg_read_addr(A, 13, 16, 0, nmat=1)
    A(f's_mul_i32 s40, s36, 12288')
    A(f's_lshl_b32 s41, s37, 8')
    A(f's_add_u32 s40, s40, s41')
    srd_at(A, 28, 12, 40, MODP, 256)
    A(f'''
    v_lshrrev_b32 v11, 4, v0
    v_lshlrev_b32 v12, 2, v0
    v_lshlrev_b32 v13, 3, v11
    v_lshlrev_b32 v15, 4, v11
    v_and_b32 v14, 15, v0
    s_waitcnt vmcnt(16)
    v_and_b32 v9, 0xffff0000, v8
    v_lshlrev_b32 v8, 16, v8
    v_mul_f32 v24, {f2u(-LOG2E)}, v8
    v_mul_f32 v25, {f2u(-LOG2E)}, v9
    v_exp_f32 v24, v24
    v_exp_f32 v25, v25
    v_cmp_eq_u32 vcc, 0, v14
    v_add_f32 v24, 1.0, v24
    v_add_f32 v25, 1.0, v25
    v_rcp_f32 v26, v24
    v_rcp_f32 v27, v25
    s_nop 0
    v_fma_f32 v24, -v24, v26, 1.0
    v_fma_f32 v25, -v25, v27, 1.0
    v_fmac_f32 v26, v24, v26
    v_fmac_f32 v27, v25, v27
    v_mul_f32 v8, v8, v26
    v_mul_f32 v9, v9, v27
    v_cvt_pk_bf16_f32 v8, v8, v9
    ds_write_b32 v12, v8 offset:16384
    s_waitcnt lgkmcnt(0)
    ''')
    for ks in range(4):
        for j2 in range(2): A(f'ds_read_b64 {v(32+ks*4+2*j2,2)}, v13 offset:{16384 + ks*64 + j2*32}')
    for ks in range(4):
        A(f's_waitcnt vmcnt({12-4*ks})')
        for nt in range(4):
            for j2 in range(2):
                A(f'ds_read_b64_tr_b16 {v(64+(ks*4+nt)*4+2*j2,2)}, v{16+nt} offset:{ks*4096 + j2*2048}')
    for ks in range(4):
        if ks in (0, 3): A(f's_waitcnt lgkmcnt({8 if ks == 0 else 0})')
        for nt in range(4):
            A(f'{MF} {v(48+nt*4,4)}, {v(64+(ks*4+nt)*4,4)}, {v(32+4*ks,4)}, {"0" if ks == 0 else v(48+nt*4,4)}')
    A('s_nop 7')
    A('s_and_saveexec_b64 s[44:45], vcc')
    for nt in range(4): A(f'buffer_store_dwordx4 {v(48+nt*4,4)}, v15, s[28:31], 0 offen offset:{nt*64} sc1')
    A('s_mov_b64 exec, s[44:45]')
    A(f's_branch L_fin_{name}')
    A(f'L_zero_{name}:')
    A('s_cmp_lt_u32 s2, 248')
    A(f's_cbranch_scc1 L_fin_{name}')
    A('s_waitcnt lgkmcnt(0)')
    srd_at(A, 28, 12, None, CTR, NLINE*128)
    A(f'''
    v_lshlrev_b32 v2, 7, v0
    v_mov_b32 v8, 0
    v_mov_b32 v9, 0
    v_mov_b32 v10, 0
    v_mov_b32 v11, 0
    s_lshl_b32 s40, s33, 13
    buffer_store_dwordx4 v[8:11], v2, s[28:31], s40 offen sc1
    s_branch L_fin_{name}
    L_pf_{name}:
    {'s_cmp_ge_u32 s15, 4' if o.relay else ''}
    {f's_cbranch_scc1 L_rl_{name}' if o.relay else ''}
    s_waitcnt lgkmcnt(0)
    s_cmp_eq_u32 s15, 3
    s_cbranch_scc1 L_pf3_{name}
    ''')
    srd(A, 20, 's10', 's11', 512*8192)
    A(f'''
    s_lshl_b32 s40, s34, 1
    s_add_u32 s40, s40, s15
    s_sub_u32 s40, s40, 1
    s_lshl_b32 s40, s40, 16
    s_lshl_b32 s41, s33, 10
    s_add_u32 s40, s40, s41
    ''')
    for i in range(8):
        A(f'buffer_load_dwordx4 v[8:11], v5, s[20:23], s40 offen')
        if i < 7: A('s_add_u32 s40, s40, 8192')
    A(f's_branch L_fin_{name}')
    A(f'L_pf3_{name}:')
    code_srd(A, 20, 'main_kernel', 'L_hot_end', name)
    A('s_lshl_b32 s40, s34, 11')
    A('buffer_load_dwordx4 v[8:11], v5, s[20:23], s40 offen')
    A('buffer_load_dwordx4 v[8:11], v5, s[20:23], s40 offen offset:1024')
    srd(A, 24, 's4', 's5', 2048*1024)
    A('s_lshl_b32 s40, s2, 13')
    A('s_add_u32 s41, s40, 4096')
    for i in range(8):
        A(f'buffer_load_dwordx4 v[8:11], v5, s[24:27], s{40+(i>>2)} offen offset:{(i&3)*1024}')
    def relay():
        A(f's_branch L_fin_{name}')
        A(f'L_rl_{name}:')
        himg_dma_off(A, 6, 3, 2752)
        A(f'''
    s_and_b32 s36, s15, 1
    s_lshl_b32 s37, s2, 1
    s_add_u32 s36, s36, s37
    s_mul_i32 s36, s36, 3
    s_bfe_u32 s37, s15, 0x10001
    s_lshl_b32 s37, s37, 12
    s_cmp_ge_u32 s36, 1408
    s_cbranch_scc1 L_fin_{name}
    s_waitcnt lgkmcnt(0)
    s_cmp_ge_u32 s15, 6
    s_cselect_b32 s20, s50, s48
    s_cselect_b32 s21, s51, s49
    ''')
        srd(A, 20, 's20', 's21', 512*2752)
        for n in range(3):
            A(f'''
        s_add_u32 s38, s36, {n}
        s_min_u32 s38, s38, 1407
        s_lshr_b32 s39, s38, 6
        s_and_b32 s38, s38, 63
        s_mul_i32 s40, s38, {8*2752}
        s_lshl_b32 s41, s39, 7
        s_add_u32 s40, s40, s41
        buffer_load_dwordx4 {v(8+4*n,4)}, v3, s[20:23], s40 offen
        s_lshl_b32 s39, s39, 17
        s_lshr_b32 s41, s38, 2
        s_lshl_b32 s41, s41, 13
        s_add_u32 s39, s39, s41
        s_and_b32 s38, s38, 3
        s_lshl_b32 s38, s38, 10
        s_add_u32 s39, s39, s38
        s_add_u32 s{44+n}, s39, s37
        ''')
        srd_at(A, 28, 12, None, GI_OFF, 22*131072)
        for n in range(3):
            A(f's_waitcnt vmcnt(2)')
            A(f'buffer_store_dwordx4 {v(8+4*n,4)}, v5, s[28:31], s{44+n} offen sc1')
    if o.relay: relay()
    A(f'L_fin_{name}:')
    if o.timing:
        A('s_waitcnt vmcnt(0) lgkmcnt(0)')
        if o.relay: A('s_lshr_b32 s15, s15, 1')
    st('end')
    st.dump(0, 12)
    A(f'L_end_{name}:')
    A('s_endpgm')
    return (name, 256, 512 if o.relay else 256, 17408, 128, 100, 128), st.names

lab = [0]
SLP = ['']
def signal(A, soff, vmn, cond=None, nrep=8, val='1'):
    lab[0] += 1; n = lab[0]
    A('v_lshlrev_b32 v3, 7, v0')
    A(f'v_mov_b32 v1, {val}')
    A(f's_waitcnt vmcnt({vmn})')
    A('s_barrier')
    A(f's_cmp_lg_u32 s15, {cond if cond else 0}')
    A(f's_cbranch_scc1 L_sig{n}')
    A(f's_mov_b64 exec, {(1 << nrep) - 1}')
    A(f'buffer_atomic_add v1, v3, {s(SF,4)}, s{soff} offen sc1')
    A('s_mov_b64 exec, -1')
    A(f'L_sig{n}:')

def wait_ctr(A, soff, target, nl, pre_bar=None, clamp=None):
    lab[0] += 1; n = lab[0]
    if clamp: A(f'v_min_u32 v2, {clamp}, v0'); A('v_lshlrev_b32 v2, 10, v2')
    else: A('v_lshlrev_b32 v2, 10, v0')
    A(f'''
    s_cmp_lg_u32 s15, 0
    s_cbranch_scc1 L_wt{n}
    s_mov_b32 s40, 0
    s_mov_b64 exec, {(1 << nl) - 1}
    L_poll{n}:
    v_mov_b32 v1, 0
    buffer_atomic_add v1, v2, {s(SF,4)}, s{soff} offen sc0 sc1
    s_add_u32 s40, s40, 1
    s_waitcnt vmcnt(0)
    v_cmp_gt_u32 vcc, {target}, v1
    s_cbranch_vccz L_wt{n}
    {SLP[0]}
    s_cmp_lt_u32 s40, 0x40000
    s_cbranch_scc1 L_poll{n}
    L_wt{n}:
    s_mov_b64 exec, -1
    ''')
    if pre_bar: A(pre_bar)
    A('s_barrier')

def swait(A, offs, targets, tag):
    regs = [98, 99, 42, 43]
    A('s_mov_b32 s41, 0')
    A(f'L_sw_{tag}:')
    for r, of in zip(regs, offs): A(f's_load_dword s{r}, s[96:97], {of} glc')
    A('s_add_u32 s41, s41, 1')
    A('s_cmp_ge_u32 s41, 0x80000')
    A('s_waitcnt lgkmcnt(0)')
    A(f's_cbranch_scc1 L_sd_{tag}')
    for r, t in zip(regs, targets):
        A(f's_cmp_lt_u32 s{r}, {t}')
        A(f's_cbranch_scc1 L_sw_{tag}')
    A(f'L_sd_{tag}:')

class Rebase:
    def __init__(self, regs, base): self.regs, self.base = regs, base
    def fix(self, A, lo, span):
        if lo < self.base or lo + span > self.base + 65536:
            d = lo - self.base
            for r in self.regs:
                A(f'v_add_u32 v{r}, {d}, v{r}' if d > 0 else f'v_subrev_u32 v{r}, {-d}, v{r}')
            self.base = lo
    def off(self, x): return x - self.base

def gemm(A, vm, chunks, NQ, NT, acc, wf, bop, rb, ldsoff, j2off, first, sched, bars, order='t', last_next=None, span=8192, st=None):
    def emit(lst):
        for ins, tag in lst:
            A(ins)
            if tag is not None: vm.add(tag)
    nm = NT*NQ
    for k, c in enumerate(chunks):
        n = vm.need(lambda x: (x[0] == 'a' and x[1] <= c) or (x[0] == 'w' and x[1] <= c + 1))
        A(f's_waitcnt vmcnt({n}) lgkmcnt(0)' if n is not None else 's_waitcnt lgkmcnt(0)')
        if bars(c): A('s_barrier')
        if st: st(f'c{c}')
        nx = chunks[k+1] if k + 1 < len(chunks) else last_next
        rd = []
        if nx is not None:
            rb.fix(A, ldsoff(nx), span)
            rd = wreads(nx, NT, wf, rb, ldsoff, j2off)
        pairs = [(qb, nt) for nt in range(NT) for qb in range(NQ)] if order == 't' else [(qb, nt) for qb in range(NQ) for nt in range(NT)]
        mf = [f'{MF} {v(acc(qb,nt),4)}, {wf(c&1,nt,4)}, {bop(c,qb)}, {"0" if c == first else v(acc(qb,nt),4)}' for qb, nt in pairs]
        units = units_of(sched(c))
        F = {g: [] for g in range(nm)}
        ug = [(i * (nm - 1)) // len(units) + (1 if len(units) < nm//2 else 0) for i in range(len(units))] if units else []
        for g, u in zip(ug, units): F[g] += u
        free = [g for g in range(nm - 4) if g not in ug]
        if 2*len(free) < len(rd): free = list(range(nm - 4))
        per = 1 if len(free) >= len(rd) else 2
        for i, r in enumerate(rd): F[free[i // per]].insert(0, (r, None))
        for g in range(nm):
            A(mf[g]); emit(F[g])

def place(A, vm, mf, rd, vmem, valu=(), valu_from=0):
    def emit(lst):
        for ins, tag in lst:
            A(ins)
            if tag is not None: vm.add(tag)
    nm = len(mf)
    units = units_of(vmem)
    F = {g: [] for g in range(nm)}
    cost = {g: 0 for g in range(nm)}
    ug = [(i * (nm - 1)) // len(units) + (1 if len(units) < nm//2 else 0) for i in range(len(units))] if units else []
    for g, u in zip(ug, units): F[g] += u; cost[g] += 2
    free = [g for g in range(nm - 4) if g not in ug]
    if 2*len(free) < len(rd): free = list(range(nm - 4))
    per = 1 if (len(free) >= len(rd) and not valu) else 2
    for i, r in enumerate(rd): F[free[i // per]].insert(0, (r, None)); cost[free[i // per]] += 1
    valu = [x if isinstance(x, tuple) else (x, None) for x in valu]
    gaps = list(range(valu_from, nm))
    w = lambda it: 2 if it[0].startswith('buffer') else 1
    tot = sum(w(x) for x in valu) + sum(cost[g] for g in gaps)
    lvl = max(2, -(-tot // len(gaps)))
    i = 0
    for g in gaps:
        while i < len(valu) and (cost[g] + w(valu[i]) <= lvl or g == nm - 1):
            if valu[i][0].startswith('buffer') and cost[g] > 0 and g != nm - 1: break
            F[g].append(valu[i]); cost[g] += w(valu[i]); i += 1
    for g in range(nm):
        A(mf[g]); emit(F[g])

def wreads(c, NT, wf, rb, ldsoff, j2off):
    return [f'ds_read_b64_tr_b16 {wf(c&1,nt,2,2*j2)}, v{rb.regs[nt]} offset:{rb.off(ldsoff(c)) + j2*j2off}' for nt in range(NT) for j2 in range(2)]

def row8_addrs(A, t, vx, vf, vm_):
    A(f'''
    v_and_b32 v{t}, 7, v21
    v_lshrrev_b32 v{t+1}, 5, v21
    v_bfe_u32 v{t+2}, v21, 3, 2
    v_lshlrev_b32 v{vf}, 12, v{t+1}
    v_lshl_add_u32 v{vf}, v{t+2}, 8, v{vf}
    v_lshl_add_u32 v{vf}, v{t}, 4, v{vf}
    v_lshlrev_b32 v{vm_}, 7, v{t+1}
    v_lshl_add_u32 v{vm_}, v{t+2}, 4, v{vm_}
    v_lshrrev_b32 v{vx}, 1, v{vm_}
    v_lshl_add_u32 v{vx}, v{t}, 10, v{vx}
    ''')

def row_stats_write(A, x, r, t, ldsbase):
    A(f'''
    v_mov_b32 v{r}, 0
    v_mov_b32 v{r+1}, 0
    v_mov_b32 v{r+3}, 0x3f803f80
    ''')
    for j in range(8):
        A(f'v_dot2c_f32_bf16 v{r}, v{x+j}, v{r+3}')
        A(f'v_dot2c_f32_bf16 v{r+1}, v{x+j}, v{x+j}')
    A(f'''
    s_lshl_b32 s40, s15, 3
    v_bfe_u32 v{r+2}, v0, 4, 1
    v_lshl_add_u32 v{r+2}, v{r+2}, 2, s40
    v_add_f32_dpp v{r}, v{r}, v{r} row_ror:8 row_mask:0xf bank_mask:0xf
    v_add_f32_dpp v{r+1}, v{r+1}, v{r+1} row_ror:8 row_mask:0xf bank_mask:0xf
    v_lshl_add_u32 v{r+2}, v{t}, 5, v{r+2}
    s_nop 0
    v_permlane16_swap_b32 v{r}, v{r+1}
    v_add_f32 v{r}, v{r}, v{r+1}
    v_mov_b32 v{r+1}, v{r}
    s_nop 1
    v_permlane32_swap_b32 v{r}, v{r+1}
    v_add_f32 v{r}, v{r}, v{r+1}
    ds_write_b32 v{r+2}, v{r} offset:{ldsbase}
    ''')

def row_stats_finish(A, b, mean, rstd):
    A(f'''
    v_add_f32 v{b}, v{b}, v{b+2}
    v_add_f32 v{b+1}, v{b+1}, v{b+3}
    v_add_f32 v{b+4}, v{b+4}, v{b+6}
    v_add_f32 v{b+5}, v{b+5}, v{b+7}
    s_mov_b32 s40, {f2u(1/512)}
    v_add_f32 v{b}, v{b}, v{b+4}
    v_add_f32 v{b+1}, v{b+1}, v{b+5}
    v_mul_f32 v{mean}, s40, v{b}
    v_mul_f32 v{b}, v{mean}, v{mean}
    v_fma_f32 v{b}, v{b+1}, s40, -v{b}
    v_max_f32 v{b}, 0, v{b}
    v_add_f32 v{b}, {f2u(1e-5)}, v{b}
    v_rsq_f32 v{rstd}, v{b}
    s_nop 0
    v_mul_f32 v{mean}, v{mean}, v{rstd}
    ''')

def lds_o(c): return 65536 + 8192*c if c < 12 else 32768 + 8192*(c-12)
def lds_q(c): return 32768 + 8192*c
def lds_g(c): return 8192*c if c < 4 else 65536 + 8192*(c-4)
RSC = 32768

def gen_main(A, name, o):
    kernel_begin(A, name)
    st = St(A, o)
    VWADDR, VWDMA = 240, 248
    SLP[0] = f's_sleep {o.sleep}' if o.sleep else ''
    A(f'''
    s_cmp_ge_u32 s2, 256
    s_cbranch_scc1 L_end_{name}
    s_load_dwordx8 s[4:11], s[0:1], 0
    s_load_dwordx2 s[72:73], s[0:1], 104
    s_load_dwordx2 s[12:13], s[0:1], 32
    s_load_dwordx4 s[64:67], s[0:1], 48
    s_load_dwordx2 s[68:69], s[0:1], 64
    s_load_dwordx2 s[70:71], s[0:1], 88
    {'s_load_dwordx2 s[82:83], s[0:1], 72' if o.merge else ''}
    {'s_load_dwordx2 s[84:85], s[0:1], 80' if o.merge else ''}
    {'s_load_dwordx2 s[86:87], s[0:1], 96' if o.merge else ''}
    s_and_b32 s58, s2, 7
    s_bfe_u32 s14, s2, 0x20003
    s_lshr_b32 s57, s2, 5
    s_lshl_b32 s56, s58, 2
    s_add_u32 s56, s56, s14
    v_mov_b32 v21, v0
    v_lshrrev_b32 v1, 6, v0
    v_and_b32 v0, 63, v0
    v_readfirstlane_b32 s15, v1
    v_lshlrev_b32 v{VL16}, 4, v0
    v_lshlrev_b32 v54, 4, v21
    ''')
    st('start')
    vm = VM()
    def E(lst):
        for ins, tag in lst:
            A(ins)
            if tag is not None: vm.add(tag)
    MSC = 8192
    if o.merge:
        A('s_cmp_lg_u32 s15, 3')
        A(f's_cbranch_scc1 L_ncp_{name}')
        code_srd(A, 16, name, 'L_hot_end', 'self_' + name)
        A(f"""
        v_lshlrev_b32 v2, 7, v0
        s_bfe_u32 s40, s2, 0x30003
        s_lshl_b32 s40, s40, 13
        buffer_load_dword v36, v2, s[16:19], 0 offen
        buffer_load_dword v36, v2, s[16:19], s40 offen
        L_ncp_{name}:
        s_lshl_b32 s88, s15, 8
        s_add_u32 s88, s88, s2
        s_cmp_ge_u32 s88, 192
        s_cbranch_scc1 L_m1_{name}
        """)
        himg_dma_off(A, 6, 144, 6144)
        A(f"""
        v_add_u32 v145, {8*6144-1024}, v144
        v_add_u32 v146, {2*(8*6144-1024)}, v144
        v_add_u32 v147, {3*(8*6144-1024)}, v144
        s_and_b32 s36, s2, 3
        s_lshr_b32 s37, s2, 2
        s_mul_i32 s39, s36, {128*6144}
        s_lshl_b32 s40, s37, 7
        s_add_u32 s39, s39, s40
        s_lshl_b32 s40, s36, 8
        v_lshl_add_u32 v2, v0, 2, s40
        s_waitcnt lgkmcnt(0)
        """)
        if o.m2sleep:
            A('s_cmp_lt_u32 s2, 64'); A(f's_cbranch_scc1 L_ms_{name}'); A(f's_sleep {o.m2sleep}'); A(f'L_ms_{name}:')
        srd(A, 16, 's84', 's85', 512*6144)
        for ks in range(4):
            A(f's_mov_b32 m0, {MSC + ks*4096}')
            if ks: A(f's_add_u32 s39, s39, {32*6144}')
            else: srd(A, 20, 's82', 's83', 1024); A('buffer_load_dword v148, v2, s[20:23], 0 offen')
            for p in range(4):
                A(f'buffer_load_dwordx4 v{144+p}, s[16:19], s39 offen offset:{p*1024} {o.mflags} lds')
        if o.fine == 'm': st('m_iss')
        A(f'L_m1_{name}:')
    row8_addrs(A, 48, 51, 52, 53)
    A('s_lshl_b32 s40, s2, 13')
    A('s_waitcnt lgkmcnt(0)')
    srd_at(A, SX, 4, 40, 0, 8192)
    for p in range(2):
        for j in range(2):
            E([(f'buffer_load_dwordx2 {v(56+p*4+j*2,2)}, v51, {s(SX,4)}, 0 offen offset:{p*512+j*32}', ('x', 0))])
    srd_at(A, SF, 72, None, 0, XT + 1024)
    def mod_loads():
        for k in range(4):
            E([(f's_mov_b32 s42, {MODP + k*12288}', None), (f'buffer_load_dwordx4 {v(64+4*k,4)}, v54, {s(SF,4)}, s42 offen {"sc1" if o.merge else ""}', ('m', 0))])
    def xcc_or():
        A(f"""
        s_cmp_lg_u32 s15, 0
        s_cbranch_scc1 L_noid_{name}
        s_mov_b64 exec, 1
        buffer_atomic_or v55, off, {s(SF,4)}, s91 sc1
        s_mov_b64 exec, -1
        L_noid_{name}:
        """)
    if not o.merge: mod_loads()
    if o.merge:
        A('s_cmp_ge_u32 s88, 192')
        A(f's_cbranch_scc1 L_m2_{name}')
        himg_read_addr(A, 149, 152, MSC, nmat=1)
        A(f"""
        s_mul_i32 s40, s36, 12288
        s_lshl_b32 s41, s37, 8
        s_add_u32 s40, s40, s41
        s_add_u32 s40, s40, {MODP}
        v_lshrrev_b32 v149, 4, v0
        v_lshlrev_b32 v150, 2, v0
        v_lshlrev_b32 v151, 3, v149
        v_lshlrev_b32 v149, 4, v149
        v_and_b32 v156, 15, v0
        s_waitcnt vmcnt(20)
        v_and_b32 v157, 0xffff0000, v148
        v_lshlrev_b32 v148, 16, v148
        v_mul_f32 v158, {f2u(-LOG2E)}, v148
        v_mul_f32 v159, {f2u(-LOG2E)}, v157
        v_exp_f32 v158, v158
        v_exp_f32 v159, v159
        v_cmp_eq_u32 vcc, 0, v156
        v_add_f32 v158, 1.0, v158
        v_add_f32 v159, 1.0, v159
        v_rcp_f32 v160, v158
        v_rcp_f32 v161, v159
        s_nop 0
        v_fma_f32 v158, -v158, v160, 1.0
        v_fma_f32 v159, -v159, v161, 1.0
        v_fmac_f32 v160, v158, v160
        v_fmac_f32 v161, v159, v161
        v_mul_f32 v148, v148, v160
        v_mul_f32 v157, v157, v161
        v_cvt_pk_bf16_f32 v148, v148, v157
        ds_write_b32 v150, v148 offset:{MSC + 16384}
        s_waitcnt lgkmcnt(0)
        """)
        for ks in range(4):
            for j2 in range(2): A(f'ds_read_b64 {v(160+ks*4+2*j2,2)}, v151 offset:{MSC + 16384 + ks*64 + j2*32}')
        A(f"""
        s_cmp_ge_u32 s2, 8
        s_cbranch_scc1 L_nz_{name}
        v_lshlrev_b32 v2, 7, v0
        v_mov_b32 v4, 0
        v_mov_b32 v5, 0
        v_mov_b32 v6, 0
        v_mov_b32 v7, 0
        s_lshl_b32 s41, s2, 13
        s_add_u32 s41, s41, {CTR}
        buffer_store_dwordx4 v[4:7], v2, {s(SF,4)}, s41 offen sc1
        L_nz_{name}:
        """)
        if o.fine == 'm': st('m_silu')
        for ks in range(4):
            A(f's_waitcnt vmcnt({16-4*ks})')
            if o.fine == 'm' and ks in (0, 3): st(f'm_w{ks}')
            for nt in range(4):
                for j2 in range(2):
                    A(f'ds_read_b64_tr_b16 {v(176+(ks*4+nt)*4+2*j2,2)}, v{152+nt} offset:{ks*4096 + j2*2048}')
        for ks in range(4):
            if ks in (0, 3): A(f's_waitcnt lgkmcnt({8 if ks == 0 else 0})')
            for nt in range(4):
                A(f'{MF} {v(112+nt*4,4)}, {v(176+(ks*4+nt)*4,4)}, {v(160+4*ks,4)}, {"0" if ks == 0 else v(112+nt*4,4)}')
        if o.fine == 'm': st('m_mfma')
        A('s_nop 7')
        A('s_and_saveexec_b64 s[42:43], vcc')
        for nt in range(4): A(f'buffer_store_dwordx4 {v(112+nt*4,4)}, v149, {s(SF,4)}, s40 offen offset:{nt*64} sc1')
        A(f"""
        s_mov_b64 exec, -1
        s_waitcnt vmcnt(4)
        L_m2_{name}:
        """)
        st('m_done')
    img_dma_chunks(A, 1, VVDMA)
    A(f"""
    s_lshl_b32 s40, s15, 3
    v_add_u32 v37, s40, v1
    v_lshlrev_b32 v2, 13, v37
    v_lshl_add_u32 v{VWDMA}, v{VVDMA}, 4, v2
    v_lshl_add_u32 v{VWDMA+1}, v{VVDMA+1}, 4, v2
    v_add_u32 v{VWDMA+1}, {4*8192-1024}, v{VWDMA+1}
    s_lshl_b32 s48, s15, 11
    s_mul_i32 s50, s14, {o.rot[0]}
    s_mul_i32 s49, s57, {o.rot[1]}
    s_add_u32 s49, s49, s50
    s_mul_i32 s50, s58, {o.rot[2]}
    s_add_u32 s49, s49, s50
    s_and_b32 s49, s49, 15
    s_mov_b32 s50, s49
    s_lshl_b32 s59, s57, 2
    s_add_u32 s59, s59, s15
    s_lshl_b32 s41, s56, 8
    s_getreg_b32 s90, hwreg(HW_REG_XCC_ID, 0, 4)
    s_lshl_b32 s90, 1, s90
    s_lshl_b32 s91, s57, 3
    s_add_u32 s91, s91, s58
    s_lshl_b32 s91, s91, 7
    s_add_u32 s91, s91, {CTR + 256*128 + K_2}
    v_mov_b32 v55, s90
    """)
    if not o.merge: xcc_or()
    srd_at(A, SW, 10, 41, 0, 511*8192 + 256)
    iwq = mk_w(VWDMA, 32768, 32*8192, SW, 48, 49, 43, o.wflags)
    nA, nB = o.wqA, o.wqB
    hs = f"""
    s_lshr_b32 s76, s2, 3
    s_lshl_b32 s74, s76, 16
    s_bfe_u32 s40, s2, 0x20001
    s_lshl_b32 s40, s40, 10
    s_add_u32 s74, s74, s40
    s_and_b32 s40, s2, 1
    s_lshl_b32 s40, s40, 7
    s_add_u32 s74, s74, s40
    s_mov_b32 s75, 32768
    s_lshl_b32 s76, s76, 10
    s_add_u32 s77, s76, {CTR + K_H}
    s_lshl_b32 s45, s58, 7
    s_lshl_b32 s78, s57, 12
    s_add_u32 s78, s78, s45
    s_add_u32 s78, s78, {CTR + K_H}
    """
    def hsetup():
        A(hs)
        srd_at(A, SO, 72, 74, H_OFF, 65536)
        A(f's_lshl_b32 s40, s59, 16')
        srd_at(A, SA, 72, 40, H_OFF, 65536)
    def mod_final():
        for j in range(4):
            A(f'v_add_f32 v{64+j}, v{64+j}, v{68+j}')
            A(f'v_add_f32 v{72+j}, v{72+j}, v{76+j}')
        for j in range(4): A(f'v_add_f32 v{64+j}, v{64+j}, v{72+j}')
        A('v_cvt_pk_bf16_f32 v68, v64, v65'); A('v_cvt_pk_bf16_f32 v69, v66, v67')
        A('v_lshlrev_b32 v64, 16, v68'); A('v_and_b32 v65, 0xffff0000, v68'); A('v_lshlrev_b32 v66, 16, v69'); A('v_and_b32 v67, 0xffff0000, v69')
        for j in range(4): A(f'v_fma_f32 v{64+j}, v{64+j}, s44, v110')
        A('ds_write_b128 v54, v[64:67]')
    def mod_reads():
        for p in range(2):
            for j in range(2):
                A(f'ds_read_b128 {v(112+p*8+j*4,4)}, v53 offset:{p*1024+j*64}')
                A(f'ds_read_b128 {v(128+p*8+j*4,4)}, v53 offset:{2048+p*1024+j*64}')
    consts = f"""
    s_lshr_b32 s40, s15, 1
    v_cvt_f32_u32 v110, s40
    s_mov_b32 s44, {f2u(QSCALE)}
    v_lshlrev_b32 v96, 5, v48
    v_mul_f32 v110, s44, v110
    """
    if not o.merge:
        for c in range(nA): E(iwq(c))
        hsetup()
        A(f's_waitcnt vmcnt({vm.need(lambda x: x[0] == "x")})')
        row_stats_write(A, 56, 96, 48, 4096)
        A(consts)
        A(f's_waitcnt vmcnt({vm.need(lambda x: x[0] == "m")})')
        mod_final()
        A(f"""
        s_waitcnt lgkmcnt(0)
        s_barrier
        ds_read_b128 v[100:103], v96 offset:4096
        ds_read_b128 v[104:107], v96 offset:4112
        """)
        mod_reads()
        unpack8(A, 56, 80); unpack8(A, 60, 88)
        A('s_waitcnt lgkmcnt(8)')
        row_stats_finish(A, 100, 108, 109)
        for j in range(16): A(f'v_fma_f32 v{80+j}, v{80+j}, v109, -v108')
    else:
        def batch(c0, c1):
            for c in range(c0, c1):
                A.ext([x for x, _ in iwq(c)])
                if c % 3 == 2:
                    A(f"""
                    s_lshl_b32 s40, s79, 13
                    s_add_u32 m0, s40, 32768
                    s_add_u32 s40, s79, s50
                    s_and_b32 s40, s40, 15
                    s_lshl_b32 s40, s40, 18
                    buffer_load_dwordx4 v38, {s(SW,4)}, s40 offen {o.wflags} lds
                    buffer_load_dwordx4 v39, {s(SW,4)}, s40 offen offset:1024 {o.wflags} lds
                    s_add_u32 s79, s79, 3
                    """)
        assert nA % 3 == 0 and o.wq0 % 3 == 0
        hsetup()
        A(f"""
        s_lshl_b32 s40, s15, 16
        v_subrev_u32 v38, s40, v{VWDMA}
        v_subrev_u32 v39, s40, v{VWDMA+1}
        s_sub_u32 s79, s15, 1
        s_cmp_eq_u32 s15, 0
        s_cbranch_scc1 L_w0_{name}
        {f's_sleep {o.w0sleep}' if o.w0sleep else ''}
        """)
        batch(0, o.wq0)
        A(f"""
        s_waitcnt vmcnt({o.wq0*8//3})
        s_branch L_xw_{name}
        L_w0_{name}:
        s_cmp_lt_u32 s2, 192
        s_cbranch_scc1 L_xw_{name}
        s_waitcnt vmcnt(0)
        L_xw_{name}:
        """)
        row_stats_write(A, 56, 96, 48, 4096)
        A(consts)
        A(f"""
        s_mov_b32 s20, s86
        s_and_b32 s21, s87, 0xffff
        s_movk_i32 s22, 256
        s_mov_b32 s23, 0x20000
        s_cmp_ge_u32 s88, 64
        s_cbranch_scc1 L_a2_{name}
        s_mov_b64 exec, 1
        v_mov_b32 v1, 1
        s_waitcnt vmcnt(0)
        buffer_atomic_add v1, off, s[20:23], 0 sc0 sc1
        s_waitcnt vmcnt(0)
        v_readfirstlane_b32 s41, v1
        s_cmp_lg_u32 s41, 63
        s_cbranch_scc1 L_m3_{name}
        buffer_store_dword v1, off, s[20:23], 0 offset:128 sc1
        L_m3_{name}:
        s_mov_b64 exec, -1
        L_a2_{name}:
        """)
        st('arrive')
        A(f"""
        s_waitcnt lgkmcnt(0)
        s_barrier
        ds_read_b128 v[100:103], v96 offset:4096
        ds_read_b128 v[104:107], v96 offset:4112
        s_cmp_eq_u32 s15, 0
        s_cbranch_scc1 L_a0_{name}
        """)
        batch(o.wq0, nA)
        A(f'L_a0_{name}:')
        A(f's_add_u32 s49, s50, {nA}')
        A('s_and_b32 s49, s49, 15')
        unpack8(A, 56, 80); unpack8(A, 60, 88)
        A('s_waitcnt lgkmcnt(0)')
        row_stats_finish(A, 100, 108, 109)
        for j in range(16): A(f'v_fma_f32 v{80+j}, v{80+j}, v109, -v108')
        A(f"""
        s_cmp_lg_u32 s15, 0
        s_cbranch_scc1 L_gd_{name}
        s_mov_b32 s41, 0
        L_go_{name}:
        buffer_load_dword v1, off, s[20:23], 0 offset:128 sc1
        s_add_u32 s41, s41, 1
        s_waitcnt vmcnt(0)
        v_cmp_ne_u32 vcc, 0, v1
        s_cbranch_vccnz L_gd_{name}
        {f's_sleep {o.gsleep}' if o.gsleep else ''}
        s_cmp_lt_u32 s41, 0x80000
        s_cbranch_scc1 L_go_{name}
        L_gd_{name}:
        s_barrier
        """)
        st('go')
        mod_loads()
        xcc_or()
        A('s_waitcnt vmcnt(1)' if False else 's_waitcnt vmcnt(0)')
        mod_final()
        A('s_waitcnt lgkmcnt(0)')
        A('s_barrier')
        mod_reads()
    for p in range(2):
        A(f's_waitcnt lgkmcnt({4 if p == 0 else 0})')
        for j in range(8): A(f'v_fmac_f32 v{112+p*8+j}, v{80+p*8+j}, v{128+p*8+j}')
        for j in range(4): A(f'v_cvt_pk_bf16_f32 v{56+p*4+j}, v{112+p*8+2*j}, v{113+p*8+2*j}')
        E([(f'buffer_store_dwordx4 {v(56+p*4,4)}, v52, {s(SO,4)}, {"s75" if p else "0"} offen sc1', ('s', 0))])
    st('h_stored')
    if not o.merge:
        for c in range(nA, nB): E(iwq(c))
    img_read_addr(A, VTMP, VWADDR, 32768)
    signal(A, 77, vm.need(lambda x: x[0] == 's'))
    if o.merge: A('s_mov_b64 s[100:101], s[86:87]')
    st('h_signal')
    if o.merge:
        assert nA == nB
    wfv = lambda b, nt, n, off=0: v(VQ + (b*8+nt)*4 + off, n)
    rb = Rebase(list(range(VWADDR, VWADDR+8)), 32768)
    A.ext(wreads(0, 8, wfv, rb, lds_q, 4096))
    A('s_mov_b32 s77, s78')
    if ('h' in o.spoll):
        A('s_lshl_b32 s40, s15, 10')
        A('s_add_u32 s77, s77, s40')
    T = Asm()
    T(f's_lshl_b32 s40, s56, 19')
    srd_at(T, SK, 6, 40, 0, 524288)
    T(f"""
    s_add_u32 s{SV}, s8, s40
    s_addc_u32 s{SV+1}, s9, 0
    s_sub_u32 s{SV}, s{SV}, {2048+16384}
    s_subb_u32 s{SV+1}, s{SV+1}, 0
    """)
    srd(T, SV, f's{SV}', f's{SV+1}', 524288 + 2048 + 16384)
    nsal = len(T.lines)
    T(f"""
    s_lshl_b32 s{SM0}, s15, 12
    s_mov_b32 s{STHR}, {f2u(THR)}
    v_lshlrev_b32 v2, 10, v37
    v_lshl_add_u32 v44, v{VVDMA}, 4, v2
    v_lshl_add_u32 v45, v{VVDMA+1}, 4, v2
    v_add_u32 v45, {4*1024-1024}, v45
    v_lshlrev_b32 v2, 8, v37
    v_lshl_add_u32 v{VVDMA}, v{VVDMA}, 4, v2
    v_lshl_add_u32 v{VVDMA+1}, v{VVDMA+1}, 4, v2
    v_xor_b32 v3, v37, v0
    v_and_b32 v3, 15, v3
    v_lshl_add_u32 v{VKDMA}, v3, 4, v2
    v_xor_b32 v3, 4, v3
    v_lshl_add_u32 v{VKDMA+1}, v3, 4, v2
    v_bfe_u32 v2, v0, 3, 1
    v_lshlrev_b32 v2, 12, v2
    v_and_b32 v3, 7, v0
    v_lshl_add_u32 v2, v3, 8, v2
    v_lshrrev_b32 v3, 4, v0
    v_xor_b32 v3, v3, v0
    v_and_b32 v3, 15, v3
    """)
    for ds in range(4):
        T(f'v_xor_b32 v{VKADDR+ds}, {4*ds}, v3')
        T(f'v_lshl_add_u32 v{VKADDR+ds}, v{VKADDR+ds}, 4, v2')
    img_read_addr(T, VTMP, VVADDR, 0, rowform='win')
    for r in range(4): T(f'v_mov_b32 v{VONE+r}, 0x3f803f80')
    asetup = [l.strip() for l in T.lines]
    def kvwin(win, with_v):
        Lx = [(f's_add_u32 m0, s{SM0}, {((win+1)%4)*16384}', None), (f's_mov_b32 s{SOFF}, {(win+1)*8192}', None)]
        return Lx + [(dma(n, o), ('kv', win)) for n in range(4 if with_v else 2)]
    vm = VM()
    hf = lambda c, qb: (c*4+qb)*4
    iact = mk_act(4, SA, [VL16]*4, [0,1024,2048,3072], 50, 44, hf, 'sc1')
    A.ext(asetup)
    A(f'''
    s_lshl_b32 s40, s58, 19
    s_lshl_b32 s41, s14, 8
    s_add_u32 s40, s40, s41
    ''')
    srd_at(A, SWO, 12, 40, 0, 511*1024 + 256)
    A(f'''
    s_add_u32 s51, s48, 65536
    s_lshr_b32 s78, s2, 3
    s_mul_i32 s79, s58, 31
    s_add_u32 s79, s79, s78
    s_mul_i32 s40, s58, {31*745}
    s_lshr_b32 s40, s40, 13
    {'s_lshr_b32 s40, s58, 1' if o.g2d else ''}
    {'s_mul_i32 s40, s40, 11' if o.g2d else ''}
    {'s_add_u32 s40, s40, 1' if o.g2d else ''}
    {'s_lshr_b32 s40, s40, 1' if o.g2d else ''}
    s_lshl_b32 s40, s40, {17 if o.relay else 7}
    s_mul_i32 s41, s78, {16384 if o.relay else 16*2752}
    s_add_u32 s40, s40, s41
    s_and_b32 s42, s15, 1
    s_mul_i32 s41, s42, {8192 if o.relay else 0}
    s_add_u32 s40, s40, s41
    s_add_u32 s40, s40, {GI_OFF if o.relay else 0}
    s_cmp_eq_u32 s15, 1
    s_cselect_b32 s88, s66, s64
    s_cselect_b32 s89, s67, s65
    s_mul_i32 s41, {'s78' if o.pfd == 'l2' else 's2'}, {43*1024 if o.pfd == 'l2' else 5504}
    s_mul_i32 s43, s42, {22*1024 if o.pfd == 'l2' else 4096}
    s_add_u32 s41, s41, s43
    s_cmp_ge_u32 s15, 2
    s_cselect_b32 s{SX}, s68, {'s72' if o.relay else 's88'}
    s_cselect_b32 s{SX+1}, s69, {'s73' if o.relay else 's89'}
    s_movk_i32 s88, {2048 if o.relay else 4*2752}
    s_cselect_b32 s88, 2048, s88
    s_movk_i32 s89, {512 if o.relay else 2752}
    s_cselect_b32 s89, 512, s89
    v_lshrrev_b32 v2, 4, v0
    v_and_b32 v3, 15, v0
    v_mul_u32_u24 v2, s89, v2
    v_mul_u32_u24 v3, {56 if o.g2d else 40}, v3
    v_add_u32 v43, v3, v2
    s_cselect_b32 s80, s41, s40
    s_cselect_b32 s81, {o.pfs[1]}, {o.pfs[0]}
    s_cselect_b32 s86, {o.pfs[1] - (11 if o.pfd == 'l2' else 2)}, {o.pfs[0] - 4}
    s_mov_b32 s87, {GI_OFF + 22*131072 if o.relay else 1376*1024}
    s_cselect_b32 s87, {1376*1024}, s87
    ''')
    srd(A, SX, f's{SX}', f's{SX+1}', 0)
    A(f'''
    s_lshl_b32 s40, s59, 19
    s_lshl_b32 s41, s56, 14
    s_add_u32 s41, s40, s41
    ''')
    srd_at(A, SO, 72, 41, O_OFF, 16384)
    if ('h' in o.spoll):
        A('s_mov_b64 s[82:83], s[96:97]'); A('s_mov_b64 s[84:85], s[98:99]')
        A('s_add_u32 s96, s72, s77'); A('s_addc_u32 s97, s73, 0')
        if not o.merge: A('s_waitcnt vmcnt(0)'); A('s_barrier')
        swait(A, ['0'], [8], 'h')
        A('s_mov_b64 s[96:97], s[82:83]'); A('s_mov_b32 s98, s84'); A('s_mov_b32 s99, 0x20000')
    else:
        wait_ctr(A, 77, 8, 4, pre_bar='s_waitcnt vmcnt(0)')
    st('h_ready')
    D0 = o.actD0
    for c in range(D0): E(iact(c))
    nx = [D0]; nw = [nB]
    def sched_q(c):
        g = []
        for _ in range(o.qact[c] if c < len(o.qact) else 0):
            if nx[0] < 16: g += iact(nx[0]); nx[0] += 1
        if nw[0] < 16 and c >= o.qw0: g += [(i_, ('wq', nw[0]) if t_ else None) for i_, t_ in iwq(nw[0])]; nw[0] += 1
        if c == 11: g += kvwin(-1, False) + kvwin(0, False)
        if c == 10: g += [(f'buffer_load_dword v47, off, {s(SF,4)}, s91 sc1', ('id', 0))]
        if c == 12: g += kvwin(1, True)
        if c == 13: g += kvwin(2, True)
        return g
    qunits = [[(c, nt) for nt in range(8)] for c in range(12)] + [[(c, nt) for nt in (2*m, 2*m+1) for c in range(12, 16)] for m in range(4)]
    wfq = lambda u, k, n, off=0: v(VQ + ((u&1)*8+k)*4 + off, n) if u < 12 else a(((u&1)*8+k)*4 + off, n)
    def qreads(u):
        rb.fix(A, lds_q(min(c for c, _ in qunits[u])), 8192 if u < 12 else 32768)
        return [f'ds_read_b64_tr_b16 {wfq(u,k,2,2*j2)}, v{rb.regs[nt]} offset:{rb.off(lds_q(c)) + j2*4096}' for k, (c, nt) in enumerate(qunits[u]) for j2 in range(2)]
    def qcvt(ds):
        L_ = [f'v_cvt_pk_bf16_f32 v{Q(qb,ds)+r}, v{QACC(qb,2*ds)+2*r}, v{QACC(qb,2*ds)+2*r+1}' for qb in range(4) for r in range(4)]
        return L_ + [f'v_permlane{k}_swap_b32 v{Q(qb,ds)+r}, v{Q(qb,ds)+2+r}' for k in (32, 16) for qb in range(4) for r in range(2)]
    for u, frs in enumerate(qunits):
        cmax = max(c for c, _ in frs)
        cn = max(c for c, _ in qunits[u+1]) if u + 1 < 16 else -1
        bar = u + 1 < 16 and cn >= nB and u <= 11 and (u == 11 or (u - nB) % 2 == 1)
        cw = (15 if u >= 10 else cn + 1) if bar else -1
        n = vm.need(lambda x: (x[0] == 'a' and x[1] <= cmax) or (x[0] == 'wq' and x[1] <= cw) or (x[0] == 'kv' and x[1] <= 0 and u == 15))
        A(f's_waitcnt vmcnt({n}) lgkmcnt(0)')
        if bar:
            assert nw[0] > min(cw, 15), (u, cw, nw)
        if bar or u == 15: A('s_barrier')
        if o.fine == 'q': st(f'q{u}')
        order = [(k, qb) for k in range(8) for qb in range(4)] if u < 12 else [(h*4+k, qb) for h in range(2) for qb in range(4) for k in range(4)]
        mf = [f'{MF} {v(QACC(qb,frs[k][1]),4)}, {wfq(u,k,4)}, {a(hf(frs[k][0],qb),4)}, {"0" if u == 0 else v(QACC(qb,frs[k][1]),4)}' for k, qb in order]
        rd = qreads(u+1) if u + 1 < 16 else [kread(kt, ds, 0) for kt in range(2) for ds in range(4)]
        place(A, vm, mf, rd, sched_q(u), qcvt(u-13) if u >= 13 else [], valu_from=6)
    assert nx[0] == 16 and nw[0] == 16
    st('qproj')
    A('v_cmp_ne_u32 vcc, s90, v47')
    A('s_lshl_b32 s49, s14, 2')
    A('s_lshl_b32 s40, s59, 19')
    A(f's_lshl_b32 s41, s58, 16')
    A(f's_add_u32 s41, s40, s41')
    srd_at(A, SA, 72, 41, O_OFF, 65536)
    A('s_cmp_eq_u64 vcc, 0')
    A(f's_cselect_b32 s91, {1 if o.local else 0}, 0')
    if o.merge:
        A(f'''
        s_lshl_b32 s40, s15, 8
        s_add_u32 s40, s40, s2
        s_sub_u32 s40, s40, 64
        s_cmp_ge_u32 s40, 128
        s_cbranch_scc1 L_n2_{name}
        s_mov_b64 exec, 1
        v_mov_b32 v1, 1
        v_mov_b32 v2, 0
        global_atomic_add v2, v1, s[100:101] offset:4 sc1
        s_mov_b64 exec, -1
        L_n2_{name}:
        ''')
    q3 = qcvt(3)
    A.ext(q3[:4])
    A('s_waitcnt lgkmcnt(0)')
    A('s_barrier')
    idx = [(qb, kt, ds) for kt in range(2) for qb in range(4) for ds in range(3)] + [(qb, kt, 3) for qb in range(4) for kt in range(2)]
    mf = [f'{MF} {v(S(0,qb,kt),4)}, {a(KF(kt,ds),4)}, {v(Q(qb,ds),4)}, {"0" if ds == 0 else v(S(0,qb,kt),4)}' for qb, kt, ds in idx]
    rest = q3[4:]
    for g in range(32):
        A(mf[g])
        if g == 0:
            A(f's_add_u32 m0, s{SM0}, 0')
            A(f's_mov_b32 s{SOFF}, {4*8192}')
        if g in (16, 18, 20, 22): A(dma(g//2 - 8, o))
        if 12 <= g < 15: A(kread(0, g-12, 1))
        if 24 <= g < 27: A(kread(1, g-24, 1))
        if g < 14: A.ext(rest[2*g:2*g+2])
    A(kread(0, 3, 1)); A(kread(1, 3, 1))
    A(f's_add_u32 s{SOFF}, s{SOFF}, 8192')
    mx = lambda qb: VT + qb
    tm = lambda qb: VT + 4 + qb
    for qb in range(4):
        b = S(0, qb)
        A(f'v_max3_f32 v{mx(qb)}, v{b}, v{b+1}, v{b+2}')
        A(f'v_max3_f32 v{tm(qb)}, v{b+3}, v{b+4}, v{b+5}')
        A(f'v_max3_f32 v{mx(qb)}, v{mx(qb)}, v{b+6}, v{b+7}')
        A(f'v_max_f32 v{mx(qb)}, v{mx(qb)}, v{tm(qb)}')
    for k in (16, 32):
        for qb in range(4): A(f'v_mov_b32 v{tm(qb)}, v{mx(qb)}')
        for qb in range(4): A(f'v_permlane{k}_swap_b32 v{mx(qb)}, v{tm(qb)}')
        for qb in range(4): A(f'v_max_f32 v{mx(qb)}, v{mx(qb)}, v{tm(qb)}')
    for qb in range(4): A(f'v_ceil_f32 v{mx(qb)}, v{mx(qb)}')
    for qb in range(4):
        for r in range(4): A(f'v_sub_f32 v{NM(qb)+r}, {f2u(-OFFS)}, v{mx(qb)}')
    for qb in range(4):
        for r in range(8): A(f'v_add_f32 v{S(0,qb)+r}, v{S(0,qb)+r}, v{NM(qb)}')
    A('s_waitcnt lgkmcnt(0)')
    st('loop_start')
    rare = []
    es = a16.emit_step
    def wo_dma(j): return f'buffer_load_dwordx4 v{44+j}, {s(SWO,4)}, s43 offen offset:{1024*j} {o.wflags} lds'
    x_wo = {o.xg[0]: ['s_mov_b32 m0, s51', 's_lshl_b32 s43, s49, 15'], o.xg[1]: [wo_dma(0)], o.xg[2]: [wo_dma(1)],
            o.xg[3]: [f's_cmp_gt_u32 s{SCNT}, 4', 's_cselect_b32 s42, 1, 0'], o.xg[4]: ['s_add_u32 s49, s49, s42', 's_lshl_b32 s42, s42, 13'],
            o.xg[5]: ['s_and_b32 s49, s49, 15', 's_add_u32 s51, s51, s42']}
    x_pf = {o.xg[0]-2: [f's_cmp_le_u32 s{SCNT}, s81', f's_cselect_b32 s{SX+2}, s87, 0'], o.xg[0]: [f's_cmp_gt_u32 s{SCNT}, s86', f's_cselect_b32 s{SX+2}, s{SX+2}, 0'],
            o.xg[1]: [f'buffer_load_dword v46, v43, {s(SX,4)}, s80 offen'], o.xg[3]: [f's_min_u32 s42, s{SX+2}, s88', 's_add_u32 s80, s80, s42']}
    x_z = {o.xg[0]: [f's_cmp_le_u32 s{SCNT}, {o.prepass}', f's_cselect_b32 s{SO+2}, 16384, 0'],
           o.xg[1]: [f'buffer_load_dword v2, v47, {s(SO,4)}, s41 offen'], o.xg[3]: [f's_lshr_b32 s42, s{SO+2}, 3', 's_add_u32 s41, s41, s42']}
    A(f's_mov_b32 s{SCNT}, 15')
    A('s_mov_b32 s41, 0')
    A('v_lshlrev_b32 v47, 5, v0')
    es(A, 0, o, 'p0', no_pv=True, check=False, first=True, vread_on=False, vmn=9, extra=x_pf)
    es(A, 1, o, 'p1', zero_o=True, vmn=10, extra=x_z); rare.append((1, 'p1'))
    A(f's_branch L_mid_{name}')
    A('.p2align 6')
    A(f'L_loop_{name}:')
    n0 = len(A.lines)
    vmn = {0: 12, 1: 11, 2: 12, 3: 12}
    for t in range(4):
        if t == 2: A(f'L_mid_{name}:')
        tail = [f's_sub_u32 s{SCNT}, s{SCNT}, 1'] if t == 3 else []
        es(A, t, o, f'l{t}', tail=tail, vmn=vmn[t], extra={2: x_wo, 0: x_pf, 1: x_z, 3: x_z}[t])
        rare.append((t, f'l{t}'))
    if o.drop:
        import re
        A.lines[n0:] = [l for l in A.lines[n0:] if not re.search(o.drop, l)]
    A(f's_cmp_lg_u32 s{SCNT}, 0')
    A(f's_cbranch_scc1 L_loop_{name}')
    def wo_tail(c0):
        seq = []
        for c in (c0, c0+1):
            seq.append(['s_add_u32 s49, s49, 1', 's_and_b32 s49, s49, 15', f's_add_u32 m0, s48, {lds_o(c)}', 's_lshl_b32 s43, s49, 15', wo_dma(0)])
            seq.append([wo_dma(1)])
        return seq
    YA = [4, 5, 6, 7, 16, 17, 18, 19]
    XA = list(range(8, 16))
    T = Asm(); img_read_addr(T, VTMP+3, 0, 32768)
    import re
    ysetup = [re.sub(r'^v_lshl_add_u32 v(\d), ', lambda m: f'v_lshl_add_u32 v{YA[int(m.group(1))]}, ', l.strip()) for l in T.lines]
    T = Asm(); code_srd(T, SX, f'L_tail_{name}', 'L_hot_end', 'tail')
    T(f's_cmp_lt_u32 s2, {o.cpf}'); T(f's_cselect_b32 s{SX+2}, s{SX+2}, 0'); T('s_lshl_b32 s42, s15, 13')
    cl_ = [l.strip() for l in T.lines]
    es(A, 0, o, 'e0', vmn=12, extra={0: [f's_mov_b32 s{SO+2}, 16384'], 2: cl_[:4], 4: cl_[4:6], 6: cl_[6:7], 8: cl_[7:9], 10: cl_[9:], 21: ['v_lshlrev_b32 v47, 7, v0'],
                                     25: [f'buffer_load_dword v46, v47, {s(SX,4)}, s42 offen']}); rare.append((0, 'e0'))
    es(A, 1, o, 'e1', vmn=10, dma_alt=wo_tail(12)); rare.append((1, 'e1'))
    es(A, 2, o, 'e2', vmn=9, dma_alt=wo_tail(14), kread_on=False); rare.append((2, 'e2'))
    x_e3 = {0: list(ysetup)}
    for dt, g_ in enumerate((37, 41, 43, 48, 51, 55, 59, 63)):
        assert g_ >= 32 + 4*dt + 3
        x_e3[g_] = [a16.vread(dt, 0, 1), a16.vread(dt, 1, 1)]
    es(A, 3, o, 'e3', vmn=8, no_qk=True, dma_on=False, kread_on=False, extra=x_e3); rare.append((3, 'e3'))
    A(f'L_tail_{name}:')
    st('loop_end')
    OWN = lambda m, qb: VQ + (m*4+qb)*4
    wfa = lambda b, k, n, off=0: a(192 + (b*8+k)*4 + off, n)
    def waddr(c, nt):
        x = lds_o(c)
        return (YA[nt], x - 32768) if x < 98304 else (XA[nt], x - 98304)
    def ureads(u, frs):
        return [f'ds_read_b64_tr_b16 {wfa(u&1,k,2,2*j2)}, v{waddr(c,nt)[0]} offset:{waddr(c,nt)[1] + j2*4096}' for k, (c, nt) in enumerate(frs) for j2 in range(2)]
    units = [[(c, nt) for nt in range(8)] for c in range(8)]
    for m in range(4):
        for gb in (8, 12):
            units.append([(c, nt) for nt in (2*m, 2*m+1) for c in range(gb, gb+4)])
    def opack(fl):
        pv = a16.pv_list(1, o)
        def pk(m):
            L_ = [f's_mov_b32 s44, {m*4096}']
            for qb in range(4):
                b = VS + ((m*4+qb) % 8) * 8
                L_ += [f'v_accvgpr_read_b32 v{b+r}, a{O(qb,2*m)+r}' for r in range(8)]
                if m < o.pkm: L_ += [f'v_mul_f32 v{b+r}, v{b+r}, v{VT+2*qb}' for r in range(8)]
                else: L_ += [f'v_pk_mul_f32 {v(b+r,2)}, {v(b+r,2)}, {v(VT+2*qb,2)}' for r in range(0, 8, 2)]
                L_ += [f'v_cvt_pk_bf16_f32 v{OWN(m,qb)+r//2}, v{b+r}, v{b+r+1}' for r in range(0, 8, 2)]
                L_.append(f'buffer_store_dwordx4 {v(OWN(m,qb),4)}, v{VL16}, {s(SO,4)}, s44 offen offset:{qb*1024} {fl}')
            return L_
        A('s_waitcnt lgkmcnt(4)')
        rd = ureads(0, units[0])
        pre = [f'v_rcp_f32 v{VT+2*qb}, v{L(1,qb)}' for qb in range(4)] + [f'v_mov_b32 v{VT+2*qb+1}, v{VT+2*qb}' for qb in range(4)]
        seq = pk(0) + pk(1)
        k = 0
        for g in range(32):
            if g == 8: A('s_waitcnt lgkmcnt(0)')
            A(pv[g])
            if g < 8: A(pre[g])
            elif g < 16: A.ext(rd[2*(g-8):2*(g-8)+2])
            if g >= 12:
                for _ in range(o.pkrate): A(seq[k]); k += 1
        A.ext(seq[k:]); A.ext(pk(2)); A.ext(pk(3))
    A('s_cmp_eq_u32 s91, 0')
    A(f's_cbranch_scc1 L_ofar_{name}')
    opack(o.ostore)
    A(f'L_oback_{name}:')
    st('o_stored')
    vm = VM()
    sf = lambda c, qb: ((c-4)*4+qb)*4
    bop = lambda c, qb: v(OWN(c,qb),4) if c < 4 else a(sf(c,qb),4)
    none = lambda c: []
    A(f"""
    s_lshl_b32 s40, s57, 3
    s_add_u32 s40, s40, s58
    s_lshl_b32 s40, s40, 7
    s_add_u32 s77, s40, {CTR + 256*128 + K_H}
    """)
    gw = f'''s_lshl_b32 s42, s83, 17
    s_add_u32 s42, s42, s48
    s_add_u32 s42, s42, {GI_OFF}
    s_add_u32 s{SW}, s72, s42
    s_addc_u32 s{SW+1}, s73, 0
    s_mov_b32 s{SW+2}, {131072 - 6144}''' if o.relay else f'''s_cmp_ge_u32 s15, 2
    s_cselect_b32 s40, s66, s64
    s_cselect_b32 s41, s67, s65
    s_lshl_b32 s42, s83, 7
    s_add_u32 s{SW}, s40, s42
    s_addc_u32 s{SW+1}, s41, 0
    s_sub_u32 s{SW+2}, {512*2752}, s42'''
    gdec = '''s_mul_i32 s83, s79, 745
    s_lshr_b32 s83, s83, 13
    s_mul_i32 s84, s83, 11
    s_sub_u32 s84, s79, s84''' if not o.g2d else '''s_cmp_ge_u32 s79, 121
    s_cselect_b32 s40, 121, 0
    s_cselect_b32 s41, 11, 0
    s_sub_u32 s40, s79, s40
    s_cmp_ge_u32 s40, 66
    s_cselect_b32 s42, 66, 0
    s_cselect_b32 s43, 6, 0
    s_cselect_b32 s83, 5, 6
    s_cselect_b32 s84, 52, 43
    s_sub_u32 s40, s40, s42
    s_add_u32 s41, s41, s43
    s_mul_i32 s84, s84, s40
    s_lshr_b32 s84, s84, 8
    s_mul_i32 s83, s83, s84
    s_sub_u32 s83, s40, s83
    s_add_u32 s83, s83, s41'''
    gsetup = f"""
    s_cmp_lt_u32 s78, 31
    s_cselect_b32 s82, 0, 5
    s_cmp_lt_u32 s79, 242
    s_cselect_b32 s82, s82, 5
    s_min_u32 s79, s79, 241
    {gdec}
    {gw}
    s_and_b32 s{SW+1}, s{SW+1}, 0xffff
    s_mov_b32 s{SW+3}, 0x20000
    s_mul_i32 s85, s79, {o.rotg[0]}
    s_mul_i32 s40, s84, {o.rotg[1]}
    s_add_u32 s85, s85, s40
    s_mul_i32 s40, s58, {o.rotg[2]}
    s_add_u32 s85, s85, s40
    s_and_b32 s85, s85, 15
    s_mov_b32 s49, s85
    s_lshl_b32 s50, s14, 2
    s_add_u32 s50, s50, 4
    s_and_b32 s50, s50, 15
    s_lshl_b32 s40, s58, 21
    s_lshl_b32 s41, s59, 16
    s_add_u32 s40, s40, s41
    s_lshl_b32 s41, s14, 14
    s_add_u32 s40, s40, s41
    """
    T = Asm(); T(gsetup); srd_at(T, SO, 72, 40, PART_OFF, 16384)
    if o.relay:
        T(f'v_mov_b32 v44, v{VL16}'); T(f'v_mov_b32 v45, v{VL16}')
    else:
        himg_dma_off(T, VTMP, 44, 2752)
        T(f'''
        s_and_b32 s40, s15, 1
        s_mul_i32 s40, s40, {16*2752}
        v_add_u32 v44, s40, v44
        v_add_u32 v45, {8*2752-1024}, v44
        ''')
    for k in range(8): T(f'v_add_u32 v{XA[k]}, 0x10000, v{YA[k]}')
    T('v_lshlrev_b32 v2, 24, v0')
    srd_at(T, SX, 72, 74, PART_OFF, (14 << 20) + 65536)
    T(f'''
    s_lshl_b32 s80, s57, 10
    s_add_u32 s80, s80, {CTR + K_P}
    s_add_u32 s40, s80, s45
    s_add_u32 s96, s72, s40
    s_addc_u32 s97, s73, 0
    s_mov_b32 s99, 0
    s_lshl_b32 s81, s15, 3
    s_lshl_b32 s86, s15, 22
    s_add_u32 s87, s86, {1 << 21}
    s_lshl_b32 s88, s58, 2
    s_lshl_b32 s88, 1, s88
    v_lshrrev_b32 v46, 2, v0
    v_and_b32 v47, 3, v0
    v_lshlrev_b32 v46, 12, v46
    v_lshl_add_u32 v46, v47, 8, v46
    ''')
    if o.pfo:
        T('s_mov_b32 s16, s68'); srd(T, 16, 's16', 's69', 1376*1024)
        T(f'''
        s_lshl_b32 s40, s78, 2
        s_add_u32 s40, s40, s15
        s_mul_i32 s20, s40, 11008
        s_add_u32 s21, s20, 5504
        v_min_u32 v43, 42, v0
        v_lshlrev_b32 v43, 7, v43
        ''')
    NP_ = (14 << 20) + 65536
    ppf = [('s_lshr_b32 s40, s98, s81', None), ('s_andn2_b32 s40, s40, s99', None), ('s_or_b32 s99, s99, s40', None),
           ('s_bitcmp1_b32 s40, 2', None), (f's_cselect_b32 s{SX+2}, {NP_}, 0', None), (f'buffer_load_dword v47, v46, {s(SX,4)}, s86 offen sc1', ('f', 0)),
           ('s_bitcmp1_b32 s40, 6', None), (f's_cselect_b32 s{SX+2}, {NP_}, 0', None), (f'buffer_load_dword v47, v46, {s(SX,4)}, s87 offen sc1', ('f', 0))]
    setup0 = [l.strip() for l in T.lines]
    iact = mk_act(4, SA, [VL16]*4, [0,1024,2048,3072], 50, 44, sf, o.oload)
    def iwg(c):
        return [(f's_add_u32 m0, s48, {lds_g(c)}', None), (f's_mul_i32 s43, s49, {8192 if o.relay else 32*2752}', None),
                (f'buffer_load_dwordx4 v44, {s(SW,4)}, s43 offen {o.wflags} lds', ('g', c)),
                ('s_add_u32 s49, s49, 1', None), ('s_and_b32 s49, s49, 15', None),
                (f'buffer_load_dwordx4 v45, {s(SW,4)}, s43 offen offset:1024 {o.wflags} lds', ('g', c))]
    def ppack(m):
        L_ = [f's_mov_b32 s42, {m*4096}']
        for qb in range(4):
            pk = VQ + (m*4+qb)*4; b = QACC(qb, 2*m)
            L_ += [f'v_cvt_pk_bf16_f32 v{pk+r//2}, v{b+r}, v{b+r+1}' for r in range(0, 8, 2)]
            L_.append((f'buffer_store_dwordx4 {v(pk,4)}, v{VL16}, {s(SO,4)}, s42 offen offset:{qb*1024} sc1', ('s', 0)))
        return L_
    nx = 4; ng = 0
    for u, frs in enumerate(units):
        if u == o.osig:
            signal(A, 77, 0, nrep=1); st('o_signal')
        if u == o.owait:
            A(f'''
            s_mov_b32 s40, 0
            L_opoll_{name}:
            s_waitcnt vmcnt(0)
            v_readfirstlane_b32 s41, v1
            s_add_u32 s40, s40, 1
            s_cmp_ge_u32 s41, 4
            s_cbranch_scc0 L_oslow_{name}
            L_oready_{name}:
            ''')
            st('o_ready')
        cmax = max(c for c, _ in frs)
        n = vm.need(lambda x: x[0] == 'a' and x[1] <= cmax)
        A(f's_waitcnt vmcnt({n}) lgkmcnt(0)' if n is not None else 's_waitcnt lgkmcnt(0)')
        if u == 8: A('s_barrier')
        if o.fine == 'o': st(f'u{u}')
        if u < 8: order = [(k, qb) for k in range(8) for qb in range(4)]
        else: order = [(h*4+k, qb) for h in range(2) for qb in range(4) for k in range(4)]
        mf = [f'{MF} {v(QACC(qb,frs[k][1]),4)}, {wfa(u&1,k,4)}, {bop(frs[k][0],qb)}, {"0" if u == 0 else v(QACC(qb,frs[k][1]),4)}' for k, qb in order]
        rd = ureads(u+1, units[u+1]) if u + 1 < len(units) else []
        g = []; valu = []
        if u >= o.owait:
            for _ in range(o.orate):
                if nx < 16: g += iact(nx); nx += 1
        if u == 0: valu = setup0
        if u == o.opoll[0]: valu = ['v_mov_b32 v1, 0', (f'buffer_atomic_add v1, v2, {s(SF,4)}, s77 offen sc0 sc1', ('p', 0))]
        if nx == 16 and not g:
            for _ in range(o.grate[u & 1]):
                if ng < min(o.ngo, 4 if u < 8 else 12): g += iwg(ng); ng += 1
        if u >= 10 and (u & 1) == 0: valu = ppack((u - 10)//2)
        if u + 1 in o.pchk: g = [('s_load_dword s98, s[96:97], 0 glc', None)] + g
        if u in o.pchk: g = ppf + g
        if u == 4 and o.merge: g = [('v_mov_b32 v36, 0', None), ('global_load_dword v36, v36, s[100:101] offset:4 sc1', ('f', 0))] + g
        if u in o.pfo: g = g + [(f'buffer_load_dword v47, v43, s[16:19], s{20 + o.pfo.index(u)} offen', ('f', 0))]
        place(A, vm, mf, rd, g, valu, valu_from=(6 if u >= 10 else (o.opoll[1] if u == o.opoll[0] else 0)))
    assert nx == 16 and ng == o.ngo, (nx, ng)
    st('oproj')
    A('s_nop 5')
    E([x if isinstance(x, tuple) else (x, None) for x in ppack(3)])
    row8_addrs(A, 4, 7, 8, 9)
    A(f'v_add_u32 v10, s48, v{VL16}')
    A('s_lshl_b32 s40, s2, 13')
    srd_at(A, SA, 4, 40, 0, 8192)
    if o.merge:
        A(f'''
        s_mov_b32 s41, 0
        L_c2_{name}:
        v_cmp_gt_u32 vcc, 0x80, v36
        s_cbranch_vccz L_c2d_{name}
        v_mov_b32 v36, 0
        global_load_dword v36, v36, s[100:101] offset:4 sc1
        s_add_u32 s41, s41, 1
        s_cmp_lt_u32 s41, 0x80000
        s_waitcnt vmcnt(0)
        s_cbranch_scc1 L_c2_{name}
        L_c2d_{name}:
        ''')
    mfl = 'sc1' if o.merge else ''
    for k in range(4):
        E([(f's_mov_b32 s42, {MODP + k*12288 + 4096}', None),
           (f'buffer_load_dwordx4 {v(112+8*k,4)}, v10, {s(SF,4)}, s42 offen {mfl}', ('m', 0)),
           (f'buffer_load_dwordx4 {v(116+8*k,4)}, v10, {s(SF,4)}, s42 offen offset:1024 {mfl}', ('m', 0))])
    for p in range(2):
        for j in range(2):
            E([(f'buffer_load_dwordx2 {v(12+p*4+j*2,2)}, v7, {s(SA,4)}, 0 offen offset:{p*512+j*32}', ('x', 0))])
    signal(A, 80, vm.need(lambda x: x[0] == 's'), val='s88')
    st('p_signal')
    srd_at(A, SA, 72, 74, PART_OFF, (14 << 20) + 65536)
    srd_at(A, SO, 72, 74, H2_OFF, 65536)
    A('s_waitcnt vmcnt(4)')
    for j in range(8):
        A(f'v_add_f32 v{112+j}, v{112+j}, v{120+j}')
        A(f'v_add_f32 v{128+j}, v{128+j}, v{136+j}')
    for j in range(8): A(f'v_add_f32 v{112+j}, v{112+j}, v{128+j}')
    for j in range(4): A(f'v_cvt_pk_bf16_f32 v{120+j}, v{112+2*j}, v{113+2*j}')
    unpack8(A, 120, 112)
    A(f'''
    s_cmp_eq_u32 s15, 2
    s_cselect_b32 s40, 1.0, 0
    ''')
    for j in range(8): A(f'v_add_f32 v{112+j}, s40, v{112+j}')
    A(f'''
    ds_write_b128 v10, v[112:115] offset:{RSC}
    ds_write_b128 v10, v[116:119] offset:{RSC+1024}
    s_waitcnt vmcnt(0)
    ''')
    unpack8(A, 12, 176); unpack8(A, 16, 184)
    A('s_load_dword s98, s[96:97], 0 glc')
    for c in range(o.ngo, o.ngp): A.ext([x for x, _ in iwg(c)])
    A(f'''
    s_mov_b32 s41, 0
    s_waitcnt lgkmcnt(0)
    s_barrier
    L_pw_{name}:
    s_cmp_eq_u32 s98, 0x44444444
    s_cbranch_scc1 L_pr_{name}
    s_lshr_b32 s40, s98, s81
    s_andn2_b32 s40, s40, s99
    s_and_b32 s40, s40, 0x44
    s_cbranch_scc0 L_pn_{name}
    ''')
    A.ext([x for x, _ in ppf[2:]])
    A(f'''
    L_pn_{name}:
    {f's_sleep {o.psleep}' if o.psleep else ''}
    s_load_dword s98, s[96:97], 0 glc
    s_add_u32 s41, s41, 1
    s_cmp_lt_u32 s41, 0x80000
    s_waitcnt lgkmcnt(0)
    s_cbranch_scc1 L_pw_{name}
    L_pr_{name}:
    ''')
    st('p_ready')
    for sp in range(8):
        A(f's_mov_b32 s42, {sp << 21}')
        A(f's_mov_b32 s43, {(sp << 21) + 32768}')
        for p in range(2):
            A(f'buffer_load_dwordx4 {v(48+(sp*2+p)*4,4)}, v8, {s(SA,4)}, s{42+p} offen sc1')
    srd_at(A, SX, 72, 74, X1_OFF, 65536)
    for vec, base in ((0, 192), (2, 208), (1, 224)):
        for p in range(2):
            for j in range(2):
                A(f'ds_read_b128 {v(base+p*8+j*4,4)}, v9 offset:{RSC + vec*2048 + p*1024 + j*64}')
    A(f'''
    s_lshl_b32 s86, s58, 2
    s_lshr_b32 s87, s2, 6
    s_add_u32 s86, s86, s87
    s_bfe_u32 s87, s2, 0x30003
    v_mov_b32 v128, 0x3f80
    v_mov_b32 v129, 0x3f800000
    ''')
    for sp in range(8):
        for p in range(2):
            A(f's_waitcnt vmcnt({15 - sp*2 - p})')
            if sp == 0: unpack8(A, 48+p*4, 112+p*8)
            else:
                for j in range(8): A(f'v_dot2c_f32_bf16 v{112+p*8+j}, v{48+(sp*2+p)*4+j//2}, v{128+(j&1)}')
    A('s_waitcnt lgkmcnt(0)')
    for j in range(16): A(f'v_fmac_f32 v{176+j}, v{192+j}, v{112+j}')
    for j in range(8): A(f'v_cvt_pk_bf16_f32 v{12+j}, v{176+2*j}, v{177+2*j}')
    row_stats_write(A, 12, 136, 4, RSC+8192)
    vm = VM()
    for p in range(2):
        E([(f'buffer_store_dwordx4 {v(12+p*4,4)}, v8, {s(SX,4)}, {"s75" if p else "0"} offen sc1', ('s', 0))])
    A(f'''
    v_lshlrev_b32 v136, 5, v4
    s_waitcnt lgkmcnt(0)
    s_barrier
    ds_read_b128 v[140:143], v136 offset:{RSC+8192}
    ds_read_b128 v[144:147], v136 offset:{RSC+8208}
    ''')
    unpack8(A, 12, 176); unpack8(A, 16, 184)
    A('s_waitcnt lgkmcnt(0)')
    row_stats_finish(A, 140, 148, 149)
    for p in range(2):
        for j in range(8): A(f'v_fma_f32 v{176+p*8+j}, v{176+p*8+j}, v149, -v148')
        for j in range(8): A(f'v_fmac_f32 v{224+p*8+j}, v{176+p*8+j}, v{208+p*8+j}')
        for j in range(4): A(f'v_cvt_pk_bf16_f32 v{112+p*4+j}, v{224+p*8+2*j}, v{225+p*8+2*j}')
        E([(f'buffer_store_dwordx4 {v(112+p*4,4)}, v8, {s(SO,4)}, {"s75" if p else "0"} offen sc1', ('s', 0))])
    st('h2_stored')
    A(f's_add_u32 s77, s76, {CTR + K_2}')
    GA = list(range(240, 248)); GB = list(range(248, 256))
    himg_read_addr(A, VTMP, GA[0], 0)
    signal(A, 77, 0)
    st('h2_signal')
    def lds_d(k): return lds_g(2*k) if k < 8 else (32768 + (k-8)*16384 if k < 10 else lds_g(0))
    def iwd(k):
        L_ = [(f's_add_u32 m0, s{SM0}, {lds_d(k)}', None), (f's_add_u32 s43, s88, {k*32*1024}', None)]
        return L_ + [(f'buffer_load_dwordx4 v{44+p}, {s(SW,4)}, s43 offen offset:{p*1024} {o.wflags} lds', ('d', k)) for p in range(4)]
    wfg = lambda b, k, n, off=0: v(48 + (b*8+k)*4 + off, n)
    def gaddr(c, nt):
        x = lds_g(c)
        if x < 65536: return GA[nt], x
        if x < 131072: return GB[nt], x - 65536
        return GA[nt], x - 131072
    def greads(u, frs):
        return [f'ds_read_b64_tr_b16 {wfg(u&1,k,2,2*j2)}, v{gaddr(c,nt)[0]} offset:{gaddr(c,nt)[1] + j2*2048}' for k, (c, nt) in enumerate(frs) for j2 in range(2)]
    gunits = [[(c, nt) for nt in range(8)] for c in range(12)]
    for pr in ((0, 1), (4, 5), (2, 3), (6, 7)):
        gunits.append([(c, nt) for nt in pr for c in range(12, 16)])
    if o.gchain:
        gunits = gunits[:4]
        for gb_ in (4, 8, 12):
            for pr in ((0, 1), (4, 5), (2, 3), (6, 7)):
                gunits.append([(c, nt) for nt in pr for c in range(gb_, gb_+4)])
    A.ext(greads(0, gunits[0]))
    if o.ngp < 16:
        if not ('c' in o.spoll):
            A('s_cmp_eq_u32 s15, 0')
            A(f's_cbranch_scc1 L_g2_{name}')
        for c in range(o.ngp, 16): A.ext([x for x, _ in iwg(c)])
        A(f'L_g2_{name}:')
    A(f"""
    s_lshl_b32 s89, s84, 2
    s_add_u32 s89, s89, s15
    s_mul_i32 s89, s89, 3
    s_mul_i32 s77, s84, 3072
    s_add_u32 s77, s77, s45
    s_add_u32 s77, s77, {CTR + K_2}
    s_cmp_eq_u32 s84, 10
    s_cselect_b32 s41, 1, 2
    s_mov_b32 s50, s85
    """)
    for qb in range(3):
        A(f's_add_u32 s42, s89, {qb}')
        fragaddr_s(A, 40, 42, 16, 43)
        A(f'v_add_u32 v{4+qb}, s40, v{VL16}')
    srd_at(A, SA, 72, None, H2_OFF, 2 << 20)
    if ('c' in o.spoll):
        A(f'''
        s_lshr_b32 s40, s89, 2
        s_min_u32 s40, s40, 31
        s_add_u32 s44, s89, 2
        s_lshr_b32 s44, s44, 2
        s_min_u32 s44, s44, 31
        s_sub_u32 s44, s44, s40
        s_lshl_b32 s44, s44, 10
        s_lshl_b32 s40, s40, 10
        s_add_u32 s40, s40, s45
        s_add_u32 s40, s40, {CTR + K_2}
        s_add_u32 s96, s72, s40
        s_addc_u32 s97, s73, 0
        ''')
        swait(A, ['0', 's44'], [8, 8], 'c2')
    else:
        wait_ctr(A, 77, 8, 3, clamp='s41')
    st('h2_ready')
    vm = VM()
    gf = lambda c, qb: (c*3+qb)*4
    gacc = lambda qb, nt: 112 + (qb*8+nt)*4
    iact = mk_act(3, SA, [4,5,6], [0,0,0], 50, 44, gf, 'sc1')
    for c in range(D0): E(iact(c))
    if o.ngp < 16 and not ('c' in o.spoll):
        A('s_cmp_lg_u32 s15, 0')
        A(f's_cbranch_scc1 L_g3_{name}')
        for c in range(o.ngp, 16): A.ext([x for x, _ in iwg(c)])
        A(f'L_g3_{name}:')
    for k in range(8): A(f'v_add_u32 v{GB[k]}, 0x10000, v{GA[k]}')
    for qb in range(3):
        A(f"""
        s_add_u32 s42, s89, {qb}
        s_lshr_b32 s40, s42, 2
        s_mul_i32 s40, s40, {43*4096}
        s_and_b32 s42, s42, 3
        s_lshl_b32 s42, s42, 10
        s_add_u32 s40, s40, s42
        s_lshl_b32 s42, s83, 13
        s_add_u32 s40, s40, s42
        v_add_u32 v{8+qb}, s40, v{VL16}
        """)
    srd_at(A, SO, 72, None, A_OFF, 128*43*1024)
    A(f's_cmp_eq_u32 s82, 0')
    A(f's_cselect_b32 s{SO+2}, s{SO+2}, 0')
    himg_dma_off(A, VTMP, 44, 1024)
    DA = list(range(224, 228)); DB = list(range(228, 232)); DC = list(range(232, 236))
    A(f"""
    v_add_u32 v45, {8192-1024}, v44
    v_add_u32 v46, {2*(8192-1024)}, v44
    v_add_u32 v47, {3*(8192-1024)}, v44
    s_lshl_b32 s42, s87, 7
    s_add_u32 s{SW}, s68, s42
    s_addc_u32 s{SW+1}, s69, 0
    s_sub_u32 s{SW+2}, {1376*1024}, s42
    s_and_b32 s{SW+1}, s{SW+1}, 0xffff
    s_mov_b32 s{SW+3}, 0x20000
    s_mul_i32 s88, s15, {11*32*1024}
    v_lshrrev_b32 v12, 4, v0
    s_lshl_b32 s40, s87, 8
    v_lshl_add_u32 v13, v12, 4, s40
    """)
    for nt in range(4): A(f'ds_read_b128 {v(208+4*nt,4)}, v13 offset:{RSC + 6144 + nt*64}')
    T = Asm()
    for k in range(4):
        T(f'v_mov_b32 v{DA[k]}, v{GA[k]}'); T(f'v_mov_b32 v{DB[k]}, v{GB[k]}'); T(f'v_add_u32 v{DC[k]}, 0x20000, v{GA[k]}')
    T(f"""
    v_and_b32 v14, 15, v0
    v_lshlrev_b32 v14, 10, v14
    v_lshl_add_u32 v14, v12, 4, v14
    s_lshl_b32 s77, s84, 2
    s_and_b32 s40, s83, 3
    s_add_u32 s77, s77, s40
    s_lshl_b32 s77, s77, 10
    s_add_u32 s77, s77, {CTR + K_A}
    s_mul_i32 s40, s86, 43
    s_lshr_b32 s40, s40, 7
    s_lshl_b32 s78, s40, 12
    s_lshl_b32 s40, s87, 7
    s_add_u32 s78, s78, s40
    s_add_u32 s78, s78, {CTR + K_A}
    v_lshrrev_b32 v15, 1, v0
    v_sub_u32 v15, 6, v15
    """)
    dsetup = [l.strip() for l in T.lines]
    def apack(m):
        L_ = []
        for qb in range(3):
            b = gacc(qb, 2*m); pk = 24 + qb*4
            L_ += [f'v_mul_f32 v{b+r}, v{b+r}, v{b+16+r}' for r in range(8)]
            L_ += [f'v_cvt_pk_bf16_f32 v{pk+r//2 if m == 0 else b+16+r//2}, v{b+r}, v{b+r+1}' for r in range(0, 8, 2)]
            L_.append((f'buffer_store_dwordx4 {v(pk if m == 0 else b+16,4)}, v{8+qb}, {s(SO,4)}, {"s44" if m else "0"} offen sc1', ('s', 0)))
        return L_
    nx = D0; dq = [0, 1, 8, 9, 2, 3, 4, 5]
    for u, frs in enumerate(gunits):
        cmax = max(c for c, _ in frs)
        n = vm.need(lambda x: x[0] == 'a' and x[1] <= cmax)
        A(f's_waitcnt vmcnt({n}) lgkmcnt(0)')
        later = set(c for f2 in gunits[u+1:] for c, _ in f2)
        g = []
        for _ in range(o.grate2):
            if nx < 16: g += iact(nx); nx += 1
        if not g:
            for _ in range(2 if u < 12 else 1):
                if dq and (dq[0] >= 8 or (2*dq[0] not in later and 2*dq[0]+1 not in later)): g += iwd(dq.pop(0))
            if g: A('s_barrier')
        elif o.ngp < 16 and u == min(o.ngp - 1, 6): A('s_barrier')
        if o.fine == 'g': st(f'g{u}')
        chain = len(set(c for c, _ in frs)) > 1
        order = [(h*4+k, qb) for h in range(2) for qb in range(3) for k in range(4)] if chain else [(k, qb) for k in range(8) for qb in range(3)]
        mf = [f'{MF} {v(gacc(qb,frs[k][1]),4)}, {wfg(u&1,k,4)}, {a(gf(frs[k][0],qb),4)}, {"0" if u == 0 else v(gacc(qb,frs[k][1]),4)}' for k, qb in order]
        rd = greads(u+1, gunits[u+1]) if u + 1 < len(gunits) else []
        valu = []
        if u == 2: valu = dsetup[:14]
        if u == 3: valu = dsetup[14:]
        if u == 6: valu = [f'v_add_u32 v{GA[k]}, 0x20000, v{GA[k]}' for k in range(8)]
        ap = apack(0)
        if u == 14: valu = ap[:13]
        if u == 15: valu = ap[13:]
        place(A, vm, mf, rd, g, valu, valu_from=(8 if u == 14 else 0))
    assert nx == 16 and not dq, dq
    st('glu')
    A('s_movk_i32 s44, 4096')
    A('s_cmp_eq_u32 s83, 21')
    A(f's_cbranch_scc1 L_skipa_{name}')
    A('s_nop 3')
    A.ext([x[0] if isinstance(x, tuple) else x for x in apack(1)])
    A(f'L_skipa_{name}:')
    signal(A, 77, 0, cond='s82')
    st('a_signal')
    dord = [0, 1, 8, 9, 2, 3, 4, 5, 6, 7, 10]
    wfd = lambda b, k, n, off=0: v(48 + (b*16+k)*4 + off, n)
    def daddr(k, wq, nt):
        x = lds_d(k) + wq*4096
        return ((DA, DB, DC)[x >> 16][nt], x & 65535)
    def dreads(u):
        k = dord[u]
        return [f'ds_read_b64_tr_b16 {wfd(u&1,nt*4+wq,2,2*j2)}, v{daddr(k,wq,nt)[0]} offset:{daddr(k,wq,nt)[1] + j2*2048}'
                for nt in range(4) for wq in range(4 if k < 10 else 3) for j2 in range(2)]
    vm = VM()
    if not ('a' in o.spoll):
        A('s_cmp_eq_u32 s15, 0')
        A(f's_cbranch_scc1 L_d1_{name}')
    A.ext([x for x, _ in iwd(6) + iwd(7)])
    A(f'L_d1_{name}:')
    A.ext(dreads(0))
    A(f"""
    s_mul_i32 s40, s86, {43*4096}
    s_lshl_b32 s41, s15, 10
    s_add_u32 s40, s40, s41
    """)
    srd_at(A, SA, 72, 40, A_OFF, 43*4096)
    A(f"""
    s_lshl_b32 s40, s86, 16
    s_lshl_b32 s41, s87, 7
    s_add_u32 s40, s40, s41
    s_lshl_b32 s41, s15, 14
    s_add_u32 s40, s40, s41
    """)
    srd_at(A, SO, 70, 40, 0, 15*1024 + 128)
    A(f"""
    s_lshl_b32 s40, s86, 16
    s_lshl_b32 s41, s87, 13
    s_add_u32 s40, s40, s41
    s_lshl_b32 s41, s15, 10
    s_add_u32 s40, s40, s41
    """)
    srd_at(A, SX, 72, 40, X1_OFF, 8192)
    if ('a' in o.spoll):
        A('s_add_u32 s96, s72, s78'); A('s_addc_u32 s97, s73, 0')
        A('s_waitcnt lgkmcnt(0)'); A('s_barrier')
        if o.d10: E(iwd(10))
        swait(A, ['0', '1024', '2048', '3072'], [6, 6, 5, 5], 'a')
    else:
        wait_ctr(A, 78, 'v15', 4, pre_bar='s_waitcnt lgkmcnt(0)')
    st('a_ready')
    df = lambda u, wq: (u*4+wq)*4
    dacc = lambda nt: 176 + nt*4
    def iad(u):
        k = dord[u]; L_ = []
        for wq in range(4 if k < 10 else 3):
            L_ += [(f's_mov_b32 s44, {(11*wq+k)*4096}', None), (f'buffer_load_dwordx4 {a(df(u,wq),4)}, v{VL16}, {s(SA,4)}, s44 offen sc1', ('a', u))]
        return L_
    for u in range(o.dD0): E(iad(u))
    if not ('a' in o.spoll):
        A('s_cmp_lg_u32 s15, 0')
        A(f's_cbranch_scc1 L_d0_{name}')
        A.ext([x for x, _ in iwd(6) + iwd(7)])
        A(f'L_d0_{name}:')
    nx = o.dD0
    for u in range(11):
        k = dord[u]; nw_ = 4 if k < 10 else 3
        n = vm.need(lambda x: (x[0] == 'a' and x[1] <= u) or (x[0] == 'd' and u >= 7))
        A(f's_waitcnt vmcnt({n}) lgkmcnt(0)')
        if u == 7: A('s_barrier')
        if o.fine == 'g': st(f'd{u}')
        g = []
        for _ in range(2):
            if nx < 11: g += iad(nx); nx += 1
        if u == 1 and not (('a' in o.spoll) and o.d10): g += iwd(10)
        if u == 5: g += [('s_movk_i32 s44, 4096', None), (f'buffer_load_dwordx4 v[4:7], v{VL16}, {s(SX,4)}, 0 offen sc1', ('x', 0)),
                         (f'buffer_load_dwordx4 v[8:11], v{VL16}, {s(SX,4)}, s44 offen sc1', ('x', 0))]
        mf = [f'{MF} {v(dacc(nt),4)}, {wfd(u&1,nt*4+wq,4)}, {a(df(u,wq),4)}, {"0" if (u == 0 and wq == 0) else v(dacc(nt),4)}' for nt in range(4) for wq in range(nw_)]
        rd = dreads(u+1) if u + 1 < 11 else []
        units_ = units_of(g)
        for gi, m_ in enumerate(mf):
            A(m_)
            lo, hi = (gi*len(rd))//max(1, len(mf)-3), ((gi+1)*len(rd))//max(1, len(mf)-3)
            A.ext(rd[lo:hi])
            if gi < len(units_): E(units_[gi])
            if u == 10 and gi == 0:
                A('s_waitcnt vmcnt(0)')
                unpack8(A, 4, 24); unpack8(A, 8, 192)
    st('down')
    A('s_nop 4')
    for m in range(2):
        xb = 24 if m == 0 else 192
        for j in range(8): A(f'v_fmac_f32 v{xb+j}, v{208+8*m+j}, v{dacc(2*m)+j}')
        for j in range(4): A(f'v_cvt_pk_bf16_f32 v{4+4*m+j}, v{xb+2*j}, v{xb+2*j+1}')
    for k in (32, 16):
        for m in range(2):
            for r in range(2): A(f'v_permlane{k}_swap_b32 v{4+4*m+r}, v{4+4*m+2+r}')
    for m in range(2):
        A(f'buffer_store_dwordx4 {v(4+4*m,4)}, v14, {s(SO,4)}, 0 offen offset:{m*64} {o.outflags}')
    if o.timing: A('s_waitcnt vmcnt(0)')
    st('end')
    st.dump(0 if o.merge else 1, 72)
    A(f'L_end_{name}:')
    A('s_endpgm')
    A('L_hot_end:')
    A(f'''
    L_oslow_{name}:
    s_cmp_ge_u32 s40, 0x40000
    s_cbranch_scc1 L_oready_{name}
    v_mov_b32 v1, 0
    buffer_atomic_add v1, v2, {s(SF,4)}, s77 offen sc0 sc1
    s_branch L_opoll_{name}
    ''')
    A(f'L_ofar_{name}:')
    opack('sc1')
    A(f's_branch L_oback_{name}')
    for (t, tag) in rare:
        A(f'L_rare_{tag}:')
        A(f's_call_b64 s[46:47], L_raresub{t&1}_{name}')
        A(f's_branch L_back_{tag}')
    emit_rare_sub(A, 0, name)
    emit_rare_sub(A, 1, name)
    return (name, 256, 256, 163840, 512, 102, 256), st.names
```

```python
import sys, json
from c16 import *
import fz
from gen16 import default_pat
class Opt:
    timing = False
    drop = None
    wflags = ''; kvflags = 'nt'; outflags = 'sc1'
    order = 't'; qkorder = 'chain'; pvorder = 'dt'
    pat = None
    wqA = 9; wqB = 9; qact = (2,2,1,1,1,1,1,1,1,2,1); qw0 = 1; gchain = False; grate2 = 2; dD0 = 2
    actD0 = 2; actD = 3
    rot = (0, 1, 2); rotg = (0, 1, 2); sleep = 0; local = True; prepass = 5; pfd = 'mall'; pfs = (4, 12); relay = False; fine = None; grate = (1, 1); owait = 3; opoll = (1, 24); pkrate = 4; ngo = 6; ngp = 10; merge = True; m2sleep = 0; mflags = 'nt'; plain = False; gsleep = 2; wq0 = 3; w0sleep = 0; a1wait = False; pchk = (); pfo = (); g2d = True; spoll = 'h'; psleep = 4; d10 = True; pearly = False; pkm = 1; cpf = 16; orate = 2; oload = 'sc1'; ostore = ''
    osig = 1; dlate = 4
    xg = (20, 22, 25, 23, 24, 26)
def build(o):
    if o.pat is None: o.pat = default_pat()
    A = Asm()
    A('.amdgcn_target "amdgcn-amd-amdhsa--gfx950"')
    A('.text')
    ks = []; names = {}
    for n, g in ([] if o.merge else [('mod_kernel', fz.gen_mod)]) + [('main_kernel', fz.gen_main)]:
        n0 = len(A.lines)
        k, nm = g(A, n, o); ks.append(k); names[n] = nm
        kd = getattr(o, 'kdrop', None)
        if kd and n.startswith(kd[0]):
            import re
            A.lines[n0:] = [l for l in A.lines[n0:] if not re.search(kd[1], l)]
    txt = HEADER
    if o.timing: txt += '; STAMPS ' + json.dumps(names) + '\n'
    for (n, grid, blk, lds, nv, ns, acc) in ks:
        txt += f'; @launch kernel={n} grid=({grid},1,1) block=({blk},1,1) lds={lds}\n'
    txt += A.text() + '.section .rodata,"a"\n'
    for (n, grid, blk, lds, nv, ns, acc) in ks:
        txt += '.p2align 6\n' + kernel_desc(n, nv, ns, acc)
    if o.plain:
        assert o.merge
        K = 'adaLN_cond__gqa_block_cached__glu_gated_bilinear__prompt_kernel'
        import re
        txt = txt.replace('; @launch kernel=main_kernel ', '; @launch ')
        txt = re.sub(r'(?<![A-Za-z0-9_])main_kernel', K, txt)
    return txt
if __name__ == '__main__':
    o = Opt()
    for kv in sys.argv[2:]:
        k, val = kv.split('=', 1)
        setattr(o, k, eval(val))
    open(sys.argv[1], 'w').write(build(o))
```
